```python
import torch

def _softmax(x, axis=-1):
    return torch.softmax(x, dim=axis)
def _gelu(x):
    return torch.nn.functional.gelu(x, approximate="tanh")
def _silu(x):
    return torch.nn.functional.silu(x)
def _sigmoid(x):
    return torch.sigmoid(x)
def _layernorm(x, axis=-1, eps=1e-5):
    m = x.mean(dim=axis, keepdim=True)
    v = x.var(dim=axis, keepdim=True, unbiased=False)
    return (x - m) / torch.sqrt(v + eps)
def _scatter_add(tgt, idx, src, axis=0):
    return tgt.clone().index_add_(axis, idx, src)
def _segment_sum(src, seg, n):
    out = torch.zeros((n,) + src.shape[1:], dtype=src.dtype)
    return out.index_add_(0, seg, src)
def _pad(x, pw):
    flat = tuple(v for pair in reversed(pw) for v in pair)
    return torch.nn.functional.pad(x, flat)

kernel_name = 'recurrent_scan__compressed_kv_cla__dense_activation_relu__decode'

def setup_inputs():

    _w = (lambda a: (lambda t: t.to(torch.bfloat16) if t.is_floating_point() else t)(torch.as_tensor(a)))
    def _A_setup():
        B, H, Sq, Sk, D, M = 1, 32, 1, 16384, 128, 640
        Dc = 4 * D
        return {
            "x": _w((lambda *s: torch.randn(*s, dtype=torch.bfloat16) * 0.05)(B, Sq, M)),
            "c_kv": _w((lambda *s: torch.randn(*s, dtype=torch.bfloat16) * 0.8)(B, Sk, Dc)),
            "w_q": _w((lambda *s: torch.randn(*s, dtype=torch.bfloat16) * 1.6)(M, H, D) * (M ** -0.5)),
            "w_uk": _w((lambda *s: torch.randn(*s, dtype=torch.bfloat16) * 1.6)(Dc, H, D) * (Dc ** -0.5)),
            "w_uv": _w((lambda *s: torch.randn(*s, dtype=torch.bfloat16) * 0.8)(Dc, H, D) * (Dc ** -0.5)),
            "w_o": _w((lambda *s: torch.randn(*s, dtype=torch.bfloat16) * 0.8)(H, D, M) * ((H * D) ** -0.5)),
        }
    _A_in = _A_setup()

    def _B_setup():
        B, S, D, Dff = 1, 1, 640, 1728
        return {
            "x": _w((lambda *s: torch.randn(*s, dtype=torch.bfloat16) * 0.05)(B, S, D)),
            "w1": _w((lambda *s: torch.randn(*s, dtype=torch.bfloat16) * 0.2)(D, Dff)),
            "w2": _w((lambda *s: torch.randn(*s, dtype=torch.bfloat16) * 0.2)(Dff, D)),
        }
    _B_in = _B_setup()

    return {
        "A_x": _A_in["x"],
        "A_c_kv": _A_in["c_kv"],
        "A_w_q": _A_in["w_q"],
        "A_w_uk": _A_in["w_uk"],
        "A_w_uv": _A_in["w_uv"],
        "A_w_o": _A_in["w_o"],
        "B_x": _B_in["x"],
        "B_w1": _B_in["w1"],
        "B_w2": _B_in["w2"],
    }

def reference(A_x, A_c_kv, A_w_q, A_w_uk, A_w_uv, A_w_o, B_x, B_w1, B_w2):
    def _A_ref(x, c_kv, w_q, w_uk, w_uv, w_o):
        B, Sq, M = x.shape[0], x.shape[1], x.shape[2]
        Sk = c_kv.shape[1]
        H, D = w_q.shape[1], w_q.shape[2]
        q = torch.einsum("bqm,mhd->bhqd", x, w_q)
        k = torch.einsum("bkc,chd->bhkd", c_kv, w_uk)
        v = torch.einsum("bkc,chd->bhkd", c_kv, w_uv)
        scores = torch.einsum("bhqd,bhkd->bhqk", q, k) * (D ** -0.5)
        off = Sk - Sq
        qi = torch.arange(Sq)[:, None]
        kj = torch.arange(Sk)[None, :]
        cmask = kj <= (qi + off)
        scores = torch.where(cmask[None, None], scores, -1e9)
        p = _softmax(scores, axis=-1)
        ctx = torch.einsum("bhqk,bhkd->bhqd", p, v)
        return torch.einsum("bhqd,hdm->bqm", ctx, w_o)

    def _B_ref(x, w1, w2):
        h = torch.einsum("bsd,df->bsf", x, w1)
        zero = torch.zeros_like(h)
        h = torch.maximum(h, zero)
        return torch.einsum("bsf,fd->bsd", h, w2)

    x = A_x
    xn = _layernorm(x, axis=-1)
    s = _A_ref(xn, A_c_kv, A_w_q, A_w_uk, A_w_uv, A_w_o)
    g = _silu(_B_ref(xn, B_w1, B_w2))
    return x + s * g
```

```python
import re
TRANS = ("v_exp_f32","v_log_f32","v_rcp_f32","v_rsq_f32","v_sqrt_f32","v_sin_f32","v_cos_f32")
def regs(tok):
    tok=tok.strip()
    tok=re.sub(r"^-|^abs\(|\)$|^\|","",tok).rstrip("|")
    m=re.fullmatch(r"([vsa])(\d+)",tok)
    if m: return [(m.group(1),int(m.group(2)))]
    m=re.fullmatch(r"([vsa])\[(\d+):(\d+)\]",tok)
    if m: return [(m.group(1),i) for i in range(int(m.group(2)),int(m.group(3))+1)]
    if tok=="vcc": return [("s",106),("s",107)]
    if tok=="exec": return [("s",126),("s",127)]
    if tok=="m0": return [("s",124)]
    return []
def split_ops(s):
    out=[];d=0;cur=""
    for ch in s:
        if ch=="[":d+=1
        if ch=="]":d-=1
        if ch=="," and d==0: out.append(cur);cur=""
        else: cur+=ch
    if cur.strip(): out.append(cur)
    return [o.strip() for o in out]
class Ins:
    def __init__(self,line):
        self.line=line
        t=line.split(";")[0].strip()
        self.label=t[:-1] if t.endswith(":") else None
        self.op=None; self.dst=[]; self.src=[]; self.kind=None; self.extra={}
        if self.label or not t or t.startswith("."): return
        p=t.split(None,1); op=p[0]; rest=p[1] if len(p)>1 else ""
        op=re.sub(r"_(e32|e64|dpp)$","",op)
        self.op=op
        ops=split_ops(rest)
        mods=""
        if ops:
            lp=ops[-1].split(None,1)
            ops[-1]=lp[0]; mods=lp[1] if len(lp)>1 else ""
        self.mods=mods
        R=[regs(o) for o in ops]
        fl=lambda L:[r for x in L for r in x]
        if op.startswith("v_mfma"):
            self.kind="mfma"; self.dst=R[0]; self.A=R[1]; self.B=R[2]; self.C=R[3]; self.src=fl(R[1:])
            self.passes=8 if "32x32" in op else 4
        elif op.startswith("v_"):
            self.kind="valu"
            self.dpp=bool(re.search(r"row_|quad_perm|wave_",mods))
            if op.startswith("v_permlane") and "swap" in op:
                self.dst=fl(R[:2]); self.src=fl(R[:2]); self.extra["permlane"]=1
            elif op.startswith("v_cmp"):
                self.dst=R[0]; self.src=fl(R[1:])
            elif op in("v_readfirstlane_b32","v_readlane_b32"):
                self.dst=R[0]; self.src=fl(R[1:]); self.extra["readlane"]=1
            elif op in("v_add_co_u32","v_sub_co_u32","v_addc_co_u32","v_subb_co_u32","v_div_scale_f32"):
                self.dst=fl(R[:2]); self.src=fl(R[2:])
            else:
                self.dst=R[0]; self.src=fl(R[1:])
                if op in("v_fmac_f32","v_dot2c_f32_bf16","v_pk_fmac_f16") or self.dpp: self.src+=R[0]
            if op in TRANS: self.extra["trans"]=1
            if op.startswith("v_dot"): self.extra["dot"]=op; self.C=R[3] if len(R)>3 else R[0]
        elif op.startswith("buffer_") or op.startswith("global_"):
            self.kind="vmem"
            lds=bool(re.search(r"\blds\b",mods)) or "_lds_" in op
            if "load" in op and not lds: self.dst=R[0]; self.src=fl(R[1:])
            else: self.src=fl(R)
            if lds: self.extra["ldsdma"]=1
            if "store" in op and re.search(r"x[34]$",op):
                self.extra["widestore"]=R[0] if op.startswith("buffer_") else R[1]
        elif op.startswith("ds_"):
            self.kind="ds"
            if "read" in op or "permute" in op or "swizzle" in op: self.dst=R[0]; self.src=fl(R[1:])
            else: self.src=fl(R)
        elif op.startswith("s_"):
            self.kind="salu"
            if op in("s_nop",): self.extra["nop"]=int(ops[0],0)+1
            elif op.startswith("s_cbranch") or op=="s_branch": self.extra["target"]=ops[0]
            elif op.startswith("s_cmp") or op.startswith("s_bitcmp") or op in("s_waitcnt","s_barrier","s_sleep","s_endpgm","s_setprio"): self.src=fl(R)
            else:
                self.dst=R[0] if R else []; self.src=fl(R[1:])
def need(ins, st):
    n=0
    def req(key,ws):
        nonlocal n
        if key in st: n=max(n, ws-st[key][0])
    isv=lambda r:r[0] in "va"
    if ins.kind=="mfma":
        for r in ins.src: req(("valu_v",r),2); req(("dot",r),3)
        for r in ins.A+ins.B:
            if ("mfma_d",r) in st: req(("mfma_d",r),{4:8,8:12}[st[("mfma_d",r)][1][0]])
        for r in ins.C:
            if ("mfma_d",r) in st:
                p,d=st[("mfma_d",r)][1]
                if not (d==tuple(ins.C) and p==ins.passes): req(("mfma_d",r),{4:6,8:10}[p])
        for r in ins.dst:
            if ("mfma_d",r) in st:
                p,d=st[("mfma_d",r)][1]
                if not (d==tuple(ins.dst) and p==ins.passes): req(("mfma_d",r),{4:8,8:12}[p])
        req(("valu_s",("s",126)),4)
    elif ins.kind=="valu":
        for r in ins.src+ins.dst:
            if ("mfma_d",r) in st: req(("mfma_d",r),{4:8,8:12}[st[("mfma_d",r)][1][0]])
            if ("dot",r) in st:
                same=ins.extra.get("dot")==st[("dot",r)][1] and r in ins.C and (r not in [x for x in ins.src if x not in ins.C] or True)
                ab=[x for x in ins.src]
                cnt=ab.count(r)
                if not (ins.extra.get("dot")==st[("dot",r)][1] and r in ins.C and cnt<=1): req(("dot",r),3)
        for r in ins.dst:
            if ("mfma_c",r) in st: req(("mfma_c",r),{4:3,8:7}[st[("mfma_c",r)][1]])
            req(("wstore",r),2)
        for r in ins.src:
            if isv(r):
                if "trans" not in ins.extra: req(("trans",r),1)
                else: req(("trans",r),1)
                if ins.dpp or "permlane" in ins.extra: req(("valu_v",r),2);
                if "readlane" in ins.extra: req(("valu_v",r),1)
            else:
                req(("valu_s",r),4 if "readlane" in ins.extra else 2)
        if ins.op=="v_cndmask_b32" or ins.op in("v_addc_co_u32","v_div_fmas_f32"):
            req(("valu_s",("s",106)),4 if ins.op=="v_div_fmas_f32" else 2)
    elif ins.kind in("vmem","ds"):
        for r in ins.src+ins.dst:
            if ("mfma_d",r) in st: req(("mfma_d",r),{4:8,8:12}[st[("mfma_d",r)][1][0]])
            req(("dot",r),3)
        for r in ins.src:
            if not isv(r): req(("valu_s",r),5)
            else: req(("trans",r),1)
        for r in ins.dst:
            req(("wstore",r),1)
            if ("mfma_c",r) in st: req(("mfma_c",r),{4:3,8:7}[st[("mfma_c",r)][1]])
        if "ldsdma" in ins.extra: req(("salu_m0",0),1)
    elif ins.kind=="salu":
        for r in ins.src: req(("valu_s",r),1)
    return max(n,0)
def apply(ins, st, adv):
    st={k:(a+adv,i) for k,(a,i) in st.items() if a+adv<24}
    if ins.kind=="mfma":
        for r in ins.dst: st[("mfma_d",r)]=(0,(ins.passes,tuple(ins.dst))); st.pop(("valu_v",r),None)
        for r in ins.C: st[("mfma_c",r)]=(0,ins.passes)
    elif ins.kind=="valu":
        for r in ins.dst:
            if r[0] in "va":
                st[("valu_v",r)]=(0,None); st.pop(("mfma_d",r),None); st.pop(("trans",r),None); st.pop(("dot",r),None)
                if "trans" in ins.extra: st[("trans",r)]=(0,None)
                if "dot" in ins.extra: st[("dot",r)]=(0,ins.extra["dot"])
            else: st[("valu_s",r)]=(0,None)
    elif ins.kind=="vmem":
        for r in ins.extra.get("widestore",[]): st[("wstore",r)]=(0,None)
    elif ins.kind=="salu":
        if ("s",124) in ins.dst: st[("salu_m0",0)]=(0,None)
        for r in ins.dst: st.pop(("valu_s",r),None)
    return st
def merge(a,b):
    if a is None: return dict(b)
    o=dict(a)
    for k,(ag,i) in b.items():
        if k not in o or ag<o[k][0]: o[k]=(ag,i)
        elif k in o and o[k][1]!=i and k[0]=="mfma_d": o[k]=(min(ag,o[k][0]),(max(i[0],o[k][1][0]),None))
    return o
def process(lines):
    I=[Ins(l) for l in lines]
    nops=[0]*len(I)
    at_label={}
    for it in range(8):
        changed=False
        st={}; live=True
        newlab={}
        for n,ins in enumerate(I):
            if ins.label:
                m=at_label.get(ins.label)
                if live: st=merge(m,st) if m is not None else st
                else: st=dict(m) if m is not None else {}
                live=True
                continue
            if ins.op is None: continue
            nd=need(ins,st)
            if nd>nops[n]: nops[n]=nd; changed=True
            if nops[n]: st={k:(a+nops[n],i) for k,(a,i) in st.items()}
            adv=ins.extra.get("nop",1)
            st=apply(ins,st,adv)
            if "target" in ins.extra:
                t=ins.extra["target"]; newlab[t]=merge(newlab.get(t),st)
                if ins.op=="s_branch": live=False; st={}
            if ins.op=="s_endpgm": live=False; st={}
        if newlab!=at_label: at_label=newlab; changed=True
        if not changed: break
    out=[]
    for n,ins in enumerate(I):
        k=nops[n]
        while k>0:
            c=min(k,16); out.append(f"    s_nop {c-1}"); k-=c
        out.append(ins.line)
    return out
if __name__=="__main__":
    t="""v_mov_b32 v1, 0
v_mfma_f32_16x16x32_bf16 v[0:3], v[4:7], v[8:11], v[0:3]
v_mfma_f32_16x16x32_bf16 v[0:3], v[4:7], v[8:11], v[0:3]
v_add_f32 v5, v0, v1
v_exp_f32 v6, v5
v_mul_f32 v7, v6, v6
v_add_f32 v8, v7, v7 row_ror:8 row_mask:0xf bank_mask:0xf
v_cmp_eq_u32 vcc, v1, v2
v_cndmask_b32 v3, v1, v2, vcc
v_readfirstlane_b32 s3, v3
buffer_load_dword v1, v2, s[4:7], s3 offen
s_mov_b32 m0, s3
buffer_load_dwordx4 v2, s[4:7], s3 offen lds
L1:
v_dot2_f32_bf16 v1, v2, v3, v1
v_dot2_f32_bf16 v1, v4, v3, v1
v_add_f32 v9, v1, v1
v_mfma_f32_16x16x32_bf16 v[0:3], v[4:7], v[8:11], v[0:3]
s_cbranch_scc1 L1
""".split("\n")
    print("\n".join(process(t)))
```

```python
NAME = "recurrent_scan__compressed_kv_cla__dense_activation_relu__decode"
SIZES = {0:1280,1:16777216,2:5242880,3:4194304,4:4194304,5:5242880,6:1280,7:2211840,8:2211840,9:1280,10:256,11:268435456}
class Kern:
    def __init__(self, label=NAME+"_kernel"):
        self.L=[]; self.label=label; self.nl=0
    def __call__(self, s):
        for line in s.strip("\n").split("\n"):
            self.L.append("    "+line.strip() if not line.strip().endswith(":") else line.strip())
    def newlabel(self, p="L"):
        self.nl+=1; return f"{p}_{self.label[-12:]}_{self.nl}"
    def srd(self, b, lo, size):
        self(f"s_mov_b32 s{b}, s{lo}\ns_and_b32 s{b+1}, s{lo+1}, 0xffff\ns_mov_b32 s{b+2}, {size}\ns_mov_b32 s{b+3}, 0x20000")
    def text(self):
        return f".globl {self.label}\n.p2align 8\n.type {self.label},@function\n{self.label}:\n" + "\n".join(self.L) + "\n"
    def desc(self, nv, ns=102, accum=None):
        nv8=(nv+7)//8*8
        if accum is None: accum=min(256,(nv+3)//4*4)
        return f""".p2align 6
.amdhsa_kernel {self.label}
  .amdhsa_next_free_vgpr {nv}
  .amdhsa_next_free_sgpr {ns}
  .amdhsa_accum_offset {accum}
  .amdhsa_group_segment_fixed_size 0
  .amdhsa_kernarg_size 96
  .amdhsa_user_sgpr_count 2
  .amdhsa_user_sgpr_kernarg_segment_ptr 1
  .amdhsa_system_sgpr_workgroup_id_x 1
  .amdhsa_float_denorm_mode_32 3
.end_amdhsa_kernel
"""
def assemble_file(launch_lines, kerns):
    s = "\n".join(launch_lines) + "\n" + '.amdgcn_target "amdgcn-amd-amdhsa--gfx950"\n.text\n'
    for k,*_ in kerns: s += k.text()
    s += '.section .rodata,"a"\n'
    for k,nv,ns,acc in kerns: s += k.desc(nv,ns,acc)
    return s
```

```python
import sys, math
from kit import *
import hz
EPOCH=0x0; FLAG=0x1000; H1=0x10000; H2=0x40000; H4=0x50000; H5=0x80000; TRIG=0x180000; STAT=0x1C0000; H3=0x200000; STAMP=0x1000000
WS_SIZE=0x2000000
DPP="row_mask:0xf bank_mask:0xf"
import struct
def f32(x): return "0x%08x"%struct.unpack("<I",struct.pack("<f",x))[0]
NST=10
def gen(diag=False, RB=3, samexcd=False, trig=True, h4all=True, nt_kv=False, nt_w=False, T=16.0, spin=1<<16, trigpos=2):
    k=Kern()
    ntk=" nt" if nt_kv else ""; ntw=" nt" if nt_w else ""
    def stamp(i):
        if diag: k(f"s_memrealtime s[{80+2*i}:{81+2*i}]\ns_waitcnt lgkmcnt(0)")
    def rowred(op,x):
        for r in (8,4,2,1): k(f"{op} v{x}, v{x}, v{x} row_ror:{r} {DPP}")
    def xgrp(op,x,t):
        k(f"v_mov_b32 v{t}, v{x}\nv_permlane16_swap_b32 v{x}, v{t}\n{op} v{x}, v{x}, v{t}")
        k(f"v_mov_b32 v{t}, v{x}\nv_permlane32_swap_b32 v{x}, v{t}\n{op} v{x}, v{x}, v{t}")
    def rb(d,s):
        k(f"v_cvt_pk_bf16_f32 v{d}, v{s}, v{s}\nv_and_b32 v{d}, 0xffff0000, v{d}")
    def spin_retry(lbl, done):
        k(f"s_cbranch_scc0 {done}\ns_sub_u32 s39, s39, 1\ns_cbranch_scc0 {lbl}\ns_mov_b32 s39, 0\n{done}:")
    vL,vI,vG=1,2,3
    if diag:
        k("s_memrealtime s[80:81]")
        for i in range(82,100): k(f"s_mov_b32 s{i}, 0")
    k("s_cmp_ge_u32 s2, 256\ns_cbranch_scc1 L_end")
    k("s_load_dwordx16 s[4:19], s[0:1], 0\ns_load_dwordx8 s[20:27], s[0:1], 64")
    k("v_lshrrev_b32 v4, 6, v0\nv_and_b32 v1, 63, v0\nv_readfirstlane_b32 s3, v4\nv_and_b32 v2, 15, v1\nv_lshrrev_b32 v3, 4, v1")
    lo=(1<<RB)-1
    k(f"s_and_b32 s28, s2, {lo}\ns_lshr_b32 s30, s2, {RB+1}\ns_lshl_b32 s30, s30, {RB}\ns_or_b32 s28, s28, s30")
    k("s_mov_b32 s38, s28")
    if samexcd:
        k("s_and_b32 s30, s28, 7\ns_lshr_b32 s31, s28, 5\ns_lshl_b32 s31, s31, 3\ns_or_b32 s30, s30, s31\ns_lshl_b32 s30, s30, 2\ns_lshr_b32 s31, s28, 3\ns_and_b32 s31, s31, 3\ns_or_b32 s28, s30, s31")
    k(f"s_lshr_b32 s30, s28, 2\ns_and_b32 s31, s28, 3\ns_mov_b32 s39, {spin}")
    k("s_waitcnt lgkmcnt(0)")
    k(f"s_load_dword s29, s[26:27], {EPOCH}")
    k.srd(40,26,WS_SIZE)
    k(f"s_bitcmp1_b32 s2, {RB}\ns_cbranch_scc1 L_KV")
    WQ=0; XN=40960; QV=42240; QA=42496; HP=42752; WO=49152; W2=90112; W1=110592
    k.srd(44,8,SIZES[2]); k.srd(48,10,SIZES[3])
    k("s_cmp_ge_u32 s3, 5\ns_cbranch_scc1 L_w_not_dma")
    k("v_lshlrev_b32 v5, 1, v3\nv_xor_b32 v5, v5, v2\nv_lshlrev_b32 v5, 4, v5\nv_lshl_add_u32 v4, v3, 13, v5\nv_xor_b32 v5, 0x80, v4")
    k("s_mul_i32 s32, s31, 160\ns_lshl_b32 s33, s3, 5\ns_add_u32 s32, s32, s33\ns_lshl_b32 s32, s32, 13\ns_lshl_b32 s33, s30, 8\ns_add_u32 s32, s32, s33\ns_lshl_b32 s33, s3, 13")
    for n in range(8):
        k(f"s_add_u32 m0, s33, {WQ+1024*n}")
        if n: k(f"s_add_u32 s32, s32, {4*8192}")
        k(f"buffer_load_dwordx4 v{4+(n&1)}, s[44:47], s32 offen{ntw} lds")
    k("s_branch L_w_uk")
    k("L_w_not_dma:")
    k("s_cmp_eq_u32 s3, 5\ns_cbranch_scc0 L_w_not_ln")
    k.srd(52,4,SIZES[0])
    k("v_lshlrev_b32 v4, 2, v1")
    for n in range(5): k(f"buffer_load_dword v{8+n}, v4, s[52:55], 0 offen offset:{256*n}")
    k("s_branch L_w_uk")
    k("L_w_not_ln:")
    k("s_cmp_eq_u32 s3, 6\ns_cbranch_scc0 L_w_uk")
    k("v_mov_b32 v8, -1\nv_mov_b32 v9, -1\nv_mov_b32 v10, -1\nv_mov_b32 v11, -1")
    k("v_lshrrev_b32 v4, 2, v1\nv_and_b32 v5, 3, v1\nv_lshlrev_b32 v5, 4, v5\nv_lshl_add_u32 v4, v4, 13, v5")
    k(f"s_lshl_b32 s32, s28, 6\ns_add_u32 s32, s32, {H5}")
    for n in range(5):
        if n: k(f"s_add_u32 s32, s32, {16*8192}")
        k("buffer_store_dwordx4 v[8:11], v4, s[40:43], s32 offen sc1")
    k(f"s_lshl_b32 s32, s28, 8\ns_add_u32 s32, s32, {H2}\nv_lshlrev_b32 v4, 4, v1\ns_mov_b64 exec, 0xffff")
    k("buffer_store_dwordx4 v[8:11], v4, s[40:43], s32 offen sc1")
    k(f"s_lshl_b32 s32, s28, 7\ns_add_u32 s32, s32, {FLAG}\ns_waitcnt lgkmcnt(0)\ns_add_u32 s33, s29, 1\nv_mov_b32 v5, s33\ns_mov_b64 exec, 1\ns_waitcnt vmcnt(0)")
    k("buffer_store_dword v5, v4, s[40:43], s32 offen sc1\ns_mov_b64 exec, -1")
    k("L_w_uk:")
    k("v_lshlrev_b32 v6, 4, v3\nv_lshl_add_u32 v6, v2, 13, v6")
    k("s_lshl_b32 s32, s31, 7\ns_lshl_b32 s33, s3, 4\ns_add_u32 s32, s32, s33\ns_lshl_b32 s32, s32, 13\ns_lshl_b32 s33, s30, 8\ns_add_u32 s32, s32, s33")
    for s in range(4): k(f"buffer_load_dwordx4 v[{32+4*s}:{35+4*s}], v6, s[48:51], s32 offen offset:{64*s}{ntw}")
    k("s_waitcnt lgkmcnt(0)\ns_add_u32 s29, s29, 1")
    k("v_lshrrev_b32 v7, 2, v2\nv_and_b32 v12+0, 1, v3".replace("v12+0","v14"))
    k("v_lshl_add_u32 v14, v14, 2, v7")
    k("v_lshl_add_u32 v7, v3, 2, v7")
    k("v_bfe_u32 v15, v2, 1, 1\ns_lshl_b32 s33, s3, 1\nv_add_u32 v15, s33, v15\nv_lshlrev_b32 v28, 1, v14\nv_xor_b32 v15, v15, v28\nv_lshlrev_b32 v15, 4, v15")
    k("v_lshl_add_u32 v15, v7, 8, v15\nv_and_b32 v28, 1, v2\nv_lshl_add_u32 v15, v28, 3, v15")
    k(f"s_mul_i32 s33, s31, 320\ns_add_u32 s33, s33, {XN}\nv_lshlrev_b32 v28, 4, v3\nv_add_u32 v29, s33, v28")
    k("s_cmp_eq_u32 s3, 5\ns_cbranch_scc0 L_w_ln_done")
    k("s_waitcnt vmcnt(4)")
    for n in range(5): k(f"v_lshlrev_b32 v{16+2*n}, 16, v{8+n}\nv_and_b32 v{17+2*n}, 0xffff0000, v{8+n}")
    k("v_add_f32 v26, v16, v17")
    for n in range(18,26): k(f"v_add_f32 v26, v26, v{n}")
    rowred("v_add_f32",26); xgrp("v_add_f32",26,27)
    k(f"v_mul_f32 v26, {f32(1/640)}, v26")
    k("v_sub_f32 v30, v16, v26\nv_mul_f32 v31, v30, v30")
    for n in range(17,26): k(f"v_sub_f32 v30, v{n}, v26\nv_fmac_f32 v31, v30, v30")
    rowred("v_add_f32",31); xgrp("v_add_f32",31,27)
    k(f"v_mul_f32 v31, {f32(1/640)}, v31")
    rb(26,26); rb(31,31)
    k(f"v_add_f32 v31, {f32(1e-5)}, v31"); rb(31,31)
    k("v_sqrt_f32 v31, v31"); rb(31,31)
    k("v_rcp_f32 v30, v31\nv_fma_f32 v27, -v31, v30, 1.0\nv_fma_f32 v30, v27, v30, v30")
    k(f"v_and_b32 v4, 0x31, v1\nv_and_b32 v5, 6, v1\nv_lshl_or_b32 v4, v5, 1, v4\nv_bfe_u32 v5, v1, 3, 1\nv_lshl_or_b32 v4, v5, 1, v4\nv_lshlrev_b32 v4, 2, v4")
    for n in range(5):
        a,b=16+2*n,17+2*n
        k(f"v_sub_f32 v{a}, v{a}, v26\nv_sub_f32 v{b}, v{b}, v26\nv_cvt_pk_bf16_f32 v8, v{a}, v{b}\nv_lshlrev_b32 v{a}, 16, v8\nv_and_b32 v{b}, 0xffff0000, v8")
        for x in (a,b):
            k(f"v_mul_f32 v9, v{x}, v30\nv_fma_f32 v10, -v9, v31, v{x}\nv_fma_f32 v{x}, v10, v30, v9")
        k(f"v_cvt_pk_bf16_f32 v8, v{a}, v{b}\nds_write_b32 v4, v8 offset:{XN+256*n}")
    k("s_waitcnt lgkmcnt(0)")
    k("L_w_ln_done:")
    k("s_waitcnt vmcnt(4)\ns_barrier")
    stamp(1)
    for t in range(5):
        k(f"ds_read_b64_tr_b16 v[{48+4*t}:{49+4*t}], v15 offset:{8192*t}\nds_read_b64_tr_b16 v[{50+4*t}:{51+4*t}], v15 offset:{8192*t+4096}\nds_read_b128 v[{68+4*t}:{71+4*t}], v29 offset:{64*t}")
    k("v_and_b32 v5, 1, v2\nv_lshlrev_b32 v4, 5, v3\nv_lshl_add_u32 v4, v5, 4, v4\nv_cmp_eq_u32 vcc, 1, v5")
    k(f"s_lshl_b32 s32, s28, 10\ns_lshl_b32 s33, s3, 7\ns_add_u32 s32, s32, s33\ns_add_u32 s32, s32, {H1}\nv_mov_b32 v9, s29\nv_mov_b32 v11, s29")
    for t in range(5):
        k(f"s_waitcnt lgkmcnt({3*(4-t)})")
        k(f"v_mfma_f32_16x16x32_bf16 v[88:91], v[{48+4*t}:{51+4*t}], v[{68+4*t}:{71+4*t}], {'0' if t==0 else 'v[88:91]'}")
    k("v_cndmask_b32 v8, v88, v90, vcc\nv_cndmask_b32 v10, v89, v91, vcc")
    k("s_mov_b32 exec_lo, 0x00030003\ns_mov_b32 exec_hi, 0x00030003")
    k("buffer_store_dwordx4 v[8:11], v4, s[40:43], s32 offen sc1\ns_mov_b64 exec, -1")
    stamp(2)
    k("s_cmp_lg_u32 s3, 0\ns_cbranch_scc1 L_w_h1done")
    k(f"s_lshl_b32 s32, s30, 12\ns_add_u32 s32, s32, {H1}\nv_lshlrev_b32 v4, 4, v1")
    k("L_w_h1:")
    for p in range(4): k(f"buffer_load_dwordx4 v[{48+4*p}:{51+4*p}], v4, s[40:43], s32 offen offset:{1024*p} sc1")
    k("s_waitcnt vmcnt(0)")
    k("v_xor_b32 v5, s29, v49")
    for r in (51,53,55,57,59,61,63): k(f"v_xor_b32 v12, s29, v{r}\nv_or_b32 v5, v5, v12")
    k("v_cmp_ne_u32 vcc, 0, v5\ns_cmp_lg_u64 vcc, 0")
    spin_retry("L_w_h1","L_w_h1ok")
    k("v_add_f32 v48, v48, v52\nv_add_f32 v50, v50, v54\nv_add_f32 v56, v56, v60\nv_add_f32 v58, v58, v62\nv_add_f32 v48, v48, v56\nv_add_f32 v50, v50, v58")
    k(f"v_cvt_pk_bf16_f32 v48, v48, v50\nv_lshlrev_b32 v5, 2, v1\nds_write_b32 v5, v48 offset:{QV}\ns_waitcnt lgkmcnt(0)")
    k("L_w_h1done:")
    k("s_barrier")
    stamp(3)
    for s in range(4): k(f"ds_read_b128 v[{68+4*s}:{71+4*s}], v28 offset:{QV+64*s}")
    k(f"s_lshl_b32 s33, s3, 5\nv_lshl_add_u32 v5, v3, 3, s33\ns_mov_b32 s34, {f32(128**-0.5*math.log2(math.e))}")
    k("s_waitcnt vmcnt(0)")
    for s in range(4):
        k(f"s_waitcnt lgkmcnt({3-s})")
        k(f"v_mfma_f32_16x16x32_bf16 v[88:91], v[{32+4*s}:{35+4*s}], v[{68+4*s}:{71+4*s}], {'0' if s==0 else 'v[88:91]'}")
    for r in range(4): k(f"v_mul_f32 v{88+r}, s34, v{88+r}")
    k("v_cvt_pk_bf16_f32 v8, v88, v89\nv_cvt_pk_bf16_f32 v9, v90, v91\nv_min_u32 v8, -2, v8\nv_min_u32 v9, -2, v9")
    k("s_mov_b32 exec_lo, 0x00010001\ns_mov_b32 exec_hi, 0x00010001")
    k(f"ds_write_b64 v5, v[8:9] offset:{QA}\ns_mov_b64 exec, -1\ns_waitcnt lgkmcnt(0)\ns_barrier")
    k("s_cmp_lg_u32 s3, 0\ns_cbranch_scc1 L_w_h2done")
    k(f"s_mov_b64 exec, 0xffff\nds_read_b128 v[8:11], v4 offset:{QA}\ns_lshl_b32 s32, s28, 8\ns_add_u32 s32, s32, {H2}\ns_waitcnt lgkmcnt(0)")
    k("buffer_store_dwordx4 v[8:11], v4, s[40:43], s32 offen sc1\ns_mov_b64 exec, -1")
    k("L_w_h2done:")
    stamp(4)
    k("s_and_b32 s34, s38, 7\ns_lshr_b32 s35, s38, 5\ns_lshl_b32 s35, s35, 3\ns_add_u32 s34, s34, s35\ns_lshr_b32 s35, s38, 3\ns_and_b32 s35, s35, 3\ns_lshl_b32 s36, s34, 2\ns_add_u32 s36, s36, s35")
    k.srd(44,14,SIZES[5]); k.srd(48,18,SIZES[7]); k.srd(52,20,SIZES[8])
    k("s_and_b32 s33, s3, 1\ns_lshl_b32 s33, s33, 2\nv_lshlrev_b32 v4, 4, v1")
    for n in range(5):
        k(f"v_add_u32 v5, {4*n}, v3\nv_mul_u32_u24 v5, 13, v5\nv_lshrrev_b32 v5, 6, v5")
        k(f"v_mul_u32_u24 v12, 0x500, v5\nv_add_u32 v13, {1024*n}, v4\nv_sub_u32 v13, v13, v12\nv_add_u32 v5, s33, v5\nv_lshlrev_b32 v5, 5, v5\nv_xor_b32 v13, v13, v5\nv_add_u32 v{16+n}, v12, v13")
    k(f"s_lshl_b32 s32, s30, 9\ns_add_u32 s32, s32, {FLAG+128*128}\nv_lshlrev_b32 v5, 7, v1\nv_add_u32 v5, s32, v5")
    k(f"s_lshl_b32 s32, s28, 7\ns_add_u32 s32, s32, {TRIG}\nv_mov_b32 v12, s32\nv_cmp_eq_u32 vcc, 4, v1\nv_cndmask_b32 v5, v5, v12, vcc")
    k("s_cmp_lg_u32 s3, 0\ns_cbranch_scc1 L_w_trgdone")
    k(f"s_mov_b64 exec, {0x1f if trig else 0xf}")
    k("L_w_trg:")
    k("buffer_load_dword v12, v5, s[40:43], 0 offen sc1\ns_waitcnt vmcnt(0)\nv_cmp_ne_u32 vcc, s29, v12\ns_cmp_lg_u64 vcc, 0\ns_cbranch_scc0 L_w_trgok\ns_sleep 2")
    spin_retry("L_w_trg","L_w_trgok")
    k("s_mov_b64 exec, -1")
    k("L_w_trgdone:")
    k("s_barrier")
    stamp(5)
    k("s_cmp_ge_u32 s34, 27\ns_cbranch_scc1 L_w_noffn_ld")
    k("v_lshrrev_b32 v5, 1, v1\nv_mul_u32_u24 v5, 0xd80, v5\nv_and_b32 v12, 1, v1\nv_lshl_add_u32 v5, v12, 4, v5")
    k(f"s_mul_i32 s32, s3, {32*3456}\ns_lshl_b32 s33, s36, 5\ns_add_u32 s32, s32, s33\ns_lshl_b32 s33, s3, 10")
    for n in range(3):
        if n==2: k("s_cmp_ge_u32 s3, 4\ns_cbranch_scc1 L_w_w2ld")
        k(f"s_add_u32 m0, s33, {W1+8192*n}")
        if n: k(f"s_add_u32 s32, s32, {8*32*3456}")
        k(f"buffer_load_dwordx4 v5, s[48:51], s32 offen lds")
    k("s_branch L_w_noffn_ld")
    k("L_w_w2ld:")
    k(f"s_sub_u32 s33, s3, 4\ns_mul_i32 s33, s33, 5120\ns_mul_i32 s32, s36, 20480\ns_add_u32 s32, s32, s33")
    for n in range(5):
        k(f"s_add_u32 m0, s33, {W2+1024*n}\nbuffer_load_dwordx4 v{16+n}, s[52:55], s32 offen{ntw} lds")
    k("L_w_noffn_ld:")
    k(f"s_mul_i32 s33, s3, 5120\ns_mul_i32 s32, s28, 40960\ns_add_u32 s32, s32, s33")
    for n in range(5):
        k(f"s_add_u32 m0, s33, {WO+1024*n}\nbuffer_load_dwordx4 v{16+n}, s[44:47], s32 offen{ntw} lds")
    k("v_xor_b32 v12, s3, v14\nv_lshlrev_b32 v12, 5, v12\nv_mul_u32_u24 v15, 0x500, v7\nv_add_u32 v15, v15, v12\nv_and_b32 v12, 3, v2\nv_lshl_add_u32 v15, v12, 3, v15")
    k(f"v_add_u32 v13, {W2}, v15\nv_add_u32 v15, {WO}, v15")
    for r in range(88,92): k(f"v_mov_b32 v{r}, 0")
    for r in range(92,112): k(f"v_mov_b32 v{r}, 0")
    k("v_and_b32 v5, 7, v2\nv_lshlrev_b32 v5, 4, v5\nv_lshrrev_b32 v12, 1, v3\nv_add_u32 v5, v5, v12\nv_lshlrev_b32 v21, 13, v5\nv_lshrrev_b32 v12, 3, v2\nv_lshl_add_u32 v21, v12, 5, v21\nv_and_b32 v12, 1, v3\nv_lshl_add_u32 v21, v12, 4, v21")
    k(f"s_lshl_b32 s35, s3, 14\ns_lshl_b32 s33, s28, 6\ns_add_u32 s35, s35, s33\ns_add_u32 s35, s35, {H5}")
    k("v_and_b32 v12, 3, v2\nv_lshl_add_u32 v22, v12, 7, v28")
    k(f"s_lshl_b32 s37, s28, 9\ns_add_u32 s37, s37, {H4}")
    k("s_cmp_ge_u32 s34, 27\ns_cbranch_scc1 L_w_noffn")
    k("s_waitcnt vmcnt(5)\ns_barrier")
    stamp(6)
    k(f"s_lshl_b32 s33, s3, 10\ns_add_u32 s33, s33, {W1}\nv_lshl_add_u32 v5, v1, 3, s33\ns_lshl_b32 s33, s3, 6\ns_add_u32 s33, s33, {XN}\nv_add_u32 v12, s33, v28")
    for n in range(2):
        k(f"ds_read_b64_tr_b16 v[{48+4*n}:{49+4*n}], v5 offset:{8192*n}\nds_read_b64_tr_b16 v[{50+4*n}:{51+4*n}], v5 offset:{8192*n+512}\nds_read_b128 v[{68+4*n}:{71+4*n}], v12 offset:{512*n}")
    for n in range(5):
        k(f"ds_read_b64_tr_b16 v[{112+2*n}:{113+2*n}], v13 offset:{256*n}")
    k("s_waitcnt lgkmcnt(0)")
    k("v_mfma_f32_16x16x32_bf16 v[24:27], v[48:51], v[68:71], 0\nv_mfma_f32_16x16x32_bf16 v[24:27], v[52:55], v[72:75], v[24:27]")
    k("s_cmp_ge_u32 s3, 4\ns_cbranch_scc1 L_w_f1x")
    k(f"ds_read_b64_tr_b16 v[56:57], v5 offset:16384\nds_read_b64_tr_b16 v[58:59], v5 offset:{16384+512}\nds_read_b128 v[76:79], v12 offset:1024\ns_waitcnt lgkmcnt(0)")
    k("v_mfma_f32_16x16x32_bf16 v[24:27], v[56:59], v[76:79], v[24:27]")
    k("L_w_f1x:")
    k(f"s_lshl_b32 s33, s3, 6\nv_add_u32 v5, s33, v28\ns_mov_b32 exec_lo, 0x00010001\ns_mov_b32 exec_hi, 0x00010001\nds_write_b128 v5, v[24:27] offset:{HP}\ns_mov_b64 exec, -1\ns_waitcnt lgkmcnt(0)\ns_barrier")
    for w in range(8): k(f"ds_read_b128 v[{48+4*w}:{51+4*w}], v28 offset:{HP+64*w}")
    k("s_waitcnt lgkmcnt(0)")
    for st in (16,8,4):
        for q in range(0,st,2): k(f"v_pk_add_f32 v[{48+q}:{49+q}], v[{48+q}:{49+q}], v[{48+q+st}:{49+q+st}]")
    for r in range(4): k(f"v_max_f32 v{48+r}, 0, v{48+r}")
    for n in range(5):
        m=0x0100<<n; m|=m<<16
        k(f"s_mov_b32 exec_lo, {m:#x}\ns_mov_b32 exec_hi, {m:#x}\nv_cvt_pk_bf16_f32 v{92+2*n}, v48, v49\nv_cvt_pk_bf16_f32 v{93+2*n}, v50, v51")
    k("s_mov_b64 exec, -1")
    for n in range(5):
        k(f"v_mfma_f32_16x16x16_bf16 v[88:91], v[{112+2*n}:{113+2*n}], v[{92+2*n}:{93+2*n}], v[88:91]")
    for r in range(92,102): k(f"v_mov_b32 v{r}, 0")
    k("L_w_noffn:")
    k("s_waitcnt vmcnt(0)\ns_barrier")
    stamp(7)
    for n in range(5):
        k(f"ds_read_b64_tr_b16 v[{112+4*n}:{113+4*n}], v15 offset:{256*n}\nds_read_b64_tr_b16 v[{114+4*n}:{115+4*n}], v15 offset:{256*n+20480}")
    k("L_w_h4:")
    k("buffer_load_dwordx4 v[48:51], v22, s[40:43], s37 offen sc1\nbuffer_load_dwordx4 v[52:55], v22, s[40:43], s37 offen offset:64 sc1\ns_waitcnt vmcnt(0)")
    k("v_max3_u32 v5, v48, v49, v50\nv_max3_u32 v12, v51, v52, v53\nv_max3_u32 v5, v5, v54, v55\nv_max_u32 v5, v5, v12\nv_cmp_eq_u32 vcc, -1, v5\ns_cmp_lg_u64 vcc, 0")
    spin_retry("L_w_h4","L_w_h4ok")
    stamp(8)
    for r in range(48,56): k(f"v_add_f32 v{r}, v{r}, v{r} quad_perm:[1,0,3,2] {DPP}")
    for r in range(48,56): k(f"v_add_f32 v{r}, v{r}, v{r} quad_perm:[2,3,0,1] {DPP}")
    for n in range(5):
        m=0x0001<<n; m|=m<<16
        k(f"s_mov_b32 exec_lo, {m:#x}\ns_mov_b32 exec_hi, {m:#x}")
        for q in range(4): k(f"v_cvt_pk_bf16_f32 v{92+4*n+q}, v{48+2*q}, v{49+2*q}")
    k("s_mov_b64 exec, -1\ns_waitcnt lgkmcnt(0)")
    for n in range(5):
        k(f"v_mfma_f32_16x16x32_bf16 v[88:91], v[{112+4*n}:{115+4*n}], v[{92+4*n}:{95+4*n}], v[88:91]")
    for r in range(88,92): k(f"v_min_u32 v{r}, -2, v{r}")
    k("s_mov_b32 exec_lo, 0x1f1f1f1f\ns_mov_b32 exec_hi, 0x1f1f1f1f")
    k("buffer_store_dwordx4 v[88:91], v21, s[40:43], s35 offen sc1\ns_mov_b64 exec, -1")
    stamp(9)
    k("s_branch L_fin")
    SL=33792; SLOT=[0,SL,2*SL,0]; WUV=3*SL; SPC=WUV+32768; PB=SPC+16384; FB=PB+10240; STB=FB+128; ACC=SL
    SP=[SL,SL+16384,SPC,SPC]
    AOP=[16,48,80,16]; TOP=[112,128,144,112]; QR=160; OA=176; SA=208; PR=232
    vA,vT,vSW,vSR,vPW,vPR,vQ,vST,vDM,vM,vLs=4,5,6,7,8,9,10,11,12,13,14
    tmp=15; t2=248; t3=249; t4=250; t5=251; vF0=252; vF1=253; vMn=254
    k("L_KV:")
    k.srd(44,6,SIZES[1]); k.srd(48,12,SIZES[4])
    k(f"v_and_b32 v{tmp}, 1, v3\nv_lshlrev_b32 v{vST}, 17, v2\nv_lshl_add_u32 v{vST}, v{tmp}, 5, v{vST}\nv_lshrrev_b32 v{tmp}, 1, v3\nv_lshl_add_u32 v{vST}, v{tmp}, 4, v{vST}")
    k(f"s_lshr_b32 s32, s3, 1\ns_lshl_b32 s32, s32, 15\ns_lshl_b32 s33, s28, 8\ns_add_u32 s60, s32, s33\ns_and_b32 s33, s3, 1\ns_lshl_b32 s33, s33, 7\ns_add_u32 s60, s60, s33\ns_add_u32 s60, s60, {H3}\ns_add_u32 s61, s60, {16*131072}")
    k(f"s_lshl_b32 s62, s3, 15\ns_lshl_b32 s33, s28, 6\ns_add_u32 s62, s62, s33\ns_add_u32 s62, s62, {STAT}")
    k(f"s_lshl_b32 s63, s30, 11\ns_lshr_b32 s33, s3, 1\ns_lshl_b32 s33, s33, 9\ns_add_u32 s63, s63, s33\ns_lshl_b32 s33, s31, 7\ns_add_u32 s63, s63, s33\ns_and_b32 s33, s3, 1\ns_lshl_b32 s33, s33, 6\ns_add_u32 s63, s63, s33\ns_add_u32 s63, s63, {H4}")
    k("v_mov_b32 v16, -1\nv_mov_b32 v17, -1\nv_mov_b32 v18, -1\nv_mov_b32 v19, -1")
    for hh in range(2):
        for pi in range(2): k(f"buffer_store_dwordx4 v[16:19], v{vST}, s[40:43], s{60+hh} offen offset:{64*pi} sc1")
    k(f"v_lshlrev_b32 v{t2}, 13, v3\nv_lshlrev_b32 v{t3}, 2, v2\ns_mov_b32 exec_lo, 0x00010001\ns_mov_b32 exec_hi, 0x00010001\nbuffer_store_dwordx2 v[16:17], v{t2}, s[40:43], s62 offen sc1")
    k(f"s_mov_b64 exec, 0xffff\nbuffer_store_dword v16, v{t3}, s[40:43], s63 offen sc1\ns_mov_b64 exec, -1")
    k(f"v_lshlrev_b32 v{vDM}, 4, v1")
    k("s_lshr_b32 s34, s3, 1\ns_and_b32 s35, s3, 1")
    k(f"v_mul_u32_u24 v{vA}, 0x420, v2\nv_lshl_add_u32 v{vA}, v3, 4, v{vA}\ns_lshl_b32 s33, s34, 8\nv_add_u32 v{vA}, s33, v{vA}")
    k(f"v_lshrrev_b32 v{tmp}, 2, v2\nv_lshl_add_u32 v{tmp}, v3, 2, v{tmp}\nv_mul_u32_u24 v{vT}, 0x420, v{tmp}\nv_and_b32 v{tmp}, 3, v2\nv_lshl_add_u32 v{vT}, v{tmp}, 3, v{vT}\ns_lshl_b32 s33, s3, 7\nv_add_u32 v{vT}, s33, v{vT}")
    k(f"v_and_b32 v{tmp}, 7, v2\nv_xor_b32 v{tmp}, v{tmp}, v3\nv_lshlrev_b32 v{tmp}, 4, v{tmp}\nv_lshl_add_u32 v{vSW}, v2, 7, v{tmp}\ns_lshl_b32 s33, s34, 12\ns_lshl_b32 s32, s35, 11\ns_add_u32 s33, s33, s32\nv_add_u32 v{vSW}, s33, v{vSW}")
    k(f"s_lshl_b32 s33, s3, 2\nv_add_u32 v{t4}, s33, v3\nv_and_b32 v{tmp}, 7, v{t4}\nv_lshrrev_b32 v{t5}, 1, v2\nv_xor_b32 v{tmp}, v{tmp}, v{t5}\nv_lshlrev_b32 v{tmp}, 4, v{tmp}\nv_lshl_add_u32 v{vSR}, v{t4}, 7, v{tmp}\nv_and_b32 v{tmp}, 1, v2\nv_lshl_add_u32 v{vSR}, v{tmp}, 3, v{vSR}")
    k(f"v_mul_u32_u24 v{vPW}, 80, v{t4}\nv_lshl_add_u32 v{vPW}, v{tmp}, 2, v{vPW}\nv_and_b32 v{tmp}, 3, v{t5}\nv_lshl_add_u32 v{vPW}, v{tmp}, 4, v{vPW}\nv_lshrrev_b32 v{tmp}, 3, v2\nv_lshl_add_u32 v{vPW}, v{tmp}, 3, v{vPW}\nv_add_u32 v{vPW}, {PB}, v{vPW}")
    k(f"v_mul_u32_u24 v{vPR}, 80, v2\nv_lshl_add_u32 v{vPR}, v3, 4, v{vPR}\nv_add_u32 v{vPR}, {PB}, v{vPR}")
    k(f"v_lshlrev_b32 v{vQ}, 10, v2\nv_lshl_add_u32 v{vQ}, v3, 4, v{vQ}\ns_lshl_b32 s64, s35, 14\ns_lshl_b32 s33, s34, 8\ns_add_u32 s64, s64, s33\ns_add_u32 s64, s64, {H2}")
    k(f"s_lshl_b32 s33, s35, 6\ns_add_u32 s33, s33, s34\nv_lshl_add_u32 v{t4}, v2, 2, s33\ns_lshl_b32 s33, s3, 4\ns_add_u32 s33, s33, 128\nv_add_u32 v{t5}, s33, v2\nv_and_b32 v{tmp}, 1, v3\nv_cmp_eq_u32 vcc, 1, v{tmp}\nv_cndmask_b32 v{t4}, v{t4}, v{t5}, vcc\nv_lshlrev_b32 v{t4}, 7, v{t4}\ns_mov_b32 s65, {FLAG}")
    k("s_lshl_b32 s66, s28, 17\ns_lshl_b32 s33, s3, 12\ns_add_u32 s66, s66, s33\ns_mul_i32 s67, s3, 4224")
    k("s_waitcnt lgkmcnt(0)\ns_add_u32 s29, s29, 1")
    k("s_waitcnt vmcnt(0)\ns_barrier")
    k("s_cmp_lg_u32 s3, 7\ns_cbranch_scc1 L_k_noflag")
    k(f"s_lshl_b32 s32, s28, 7\ns_add_u32 s32, s32, {FLAG+128*128}\nv_mov_b32 v16, s29\ns_mov_b64 exec, 1\nbuffer_store_dword v16, v{vDM}, s[40:43], s32 offen sc1\ns_mov_b64 exec, -1")
    k("L_k_noflag:")
    stamp(1)
    def dma(t):
        for n in range(4):
            k(f"s_add_u32 m0, s67, {SLOT[t]+1056*n}\ns_add_u32 s33, s66, {t*32768+1024*n}\nbuffer_load_dwordx4 v{vDM}, s[44:47], s33 offen{ntk} lds")
    def pull(t):
        base=SLOT[t]
        if base>=65536-20000:
            k(f"v_add_u32 v{t2}, {base}, v{vA}\nv_add_u32 v{t3}, {base}, v{vT}"); a,tt,b=t2,t3,0
        else: a,tt,b=vA,vT,base
        for kh in range(2):
            for s in range(4):
                r=AOP[t]+16*kh+4*s
                k(f"ds_read_b128 v[{r}:{r+3}], v{a} offset:{b+kh*16*1056+64*s}")
        for tau in range(4):
            r=TOP[t]+4*tau
            k(f"ds_read_b64_tr_b16 v[{r}:{r+1}], v{tt} offset:{b+32*tau}\nds_read_b64_tr_b16 v[{r+2}:{r+3}], v{tt} offset:{b+32*tau+16*1056}")
    def dotrig():
        if not trig: return
        k("s_cmp_lg_u32 s3, 7\ns_cbranch_scc1 L_k_notrig")
        k(f"s_lshl_b32 s32, s28, 7\ns_add_u32 s32, s32, {TRIG}\nv_mov_b32 v{t5}, s29\ns_mov_b64 exec, 1\nbuffer_store_dword v{t5}, v{vDM}, s[40:43], s32 offen sc1\ns_mov_b64 exec, -1")
        k("L_k_notrig:")
    dma(0); dma(1)
    k("s_waitcnt vmcnt(4)\ns_barrier")
    stamp(2)
    k(f"s_mov_b32 exec_hi, 0\nbuffer_load_dword v{t5}, v{t4}, s[40:43], s65 offen sc1\ns_mov_b32 exec_hi, -1")
    dma(2); pull(0)
    k("s_waitcnt vmcnt(4) lgkmcnt(0)\ns_barrier")
    k("s_mov_b32 exec_hi, 0")
    k("L_k_fl:")
    k(f"v_cmp_ne_u32 vcc, s29, v{t5}\ns_cmp_lg_u64 vcc, 0\ns_cbranch_scc0 L_k_flok\nbuffer_load_dword v{t5}, v{t4}, s[40:43], s65 offen sc1\ns_waitcnt vmcnt(0)")
    spin_retry("L_k_fl","L_k_flok")
    k("s_mov_b32 exec_hi, -1")
    stamp(3)
    for s in range(4): k(f"buffer_load_dwordx4 v[{QR+4*s}:{QR+4*s+3}], v{vQ}, s[40:43], s64 offen offset:{64*s} sc1")
    if trigpos==2: dotrig()
    dma(3)
    pull(1)
    k("s_waitcnt vmcnt(4) lgkmcnt(0)\ns_barrier")
    if trigpos==3: dotrig()
    stamp(4)
    pull(2)
    k("L_k_q:")
    k(f"v_max3_u32 v{tmp}, v{QR}, v{QR+1}, v{QR+2}")
    for r in range(QR+3,QR+15,2): k(f"v_max3_u32 v{tmp}, v{tmp}, v{r}, v{r+1}")
    k(f"v_max_u32 v{tmp}, v{tmp}, v{QR+15}\nv_cmp_eq_u32 vcc, -1, v{tmp}\ns_cmp_lg_u64 vcc, 0\ns_cbranch_scc0 L_k_qok\ns_mov_b64 exec, vcc")
    for s in range(4): k(f"buffer_load_dwordx4 v[{QR+4*s}:{QR+4*s+3}], v{vQ}, s[40:43], s64 offen offset:{64*s} sc1")
    k("s_mov_b64 exec, -1\ns_waitcnt vmcnt(0)")
    if diag: k("s_add_u32 s98, s98, 1\ns_cmp_eq_u32 s3, s3")
    spin_retry("L_k_q","L_k_qok")
    k(f"s_lshl_b32 s33, s35, 2\nv_add_u32 v{tmp}, s33, v3\nv_lshlrev_b32 v{tmp}, 1, v{tmp}\nv_xor_b32 v{tmp}, v{tmp}, v2\nv_lshlrev_b32 v{tmp}, 4, v{tmp}\nv_lshl_add_u32 v{t4}, v3, 13, v{tmp}")
    k("s_lshl_b32 s32, s31, 7\ns_lshl_b32 s33, s3, 2\ns_add_u32 s32, s32, s33\ns_lshl_b32 s32, s32, 13\ns_lshl_b32 s33, s30, 8\ns_add_u32 s32, s32, s33\ns_lshl_b32 s33, s3, 10")
    for n in range(4):
        k(f"s_add_u32 m0, s33, {WUV+8192*n}")
        if n: k(f"s_add_u32 s32, s32, {32*8192}")
        k(f"buffer_load_dwordx4 v{t4}, s[48:51], s32 offen{ntw} lds")
    k("s_waitcnt lgkmcnt(0)")
    stamp(5)
    k(f"v_xor_b32 v{t4}, 64, v{vSW}")
    def gemm1(tiles):
        for ti,t in enumerate(tiles):
            for kh in range(2):
                d=SA+8*ti+4*kh
                for s in range(4):
                    a=AOP[t]+16*kh+4*s
                    k(f"v_mfma_f32_16x16x32_bf16 v[{d}:{d+3}], v[{a}:{a+3}], v[{QR+4*s}:{QR+4*s+3}], {'0' if s==0 else f'v[{d}:{d+3}]'}")
            if ti>0: swrite(ti-1,tiles[ti-1])
        swrite(len(tiles)-1,tiles[-1])
    def swrite(ti,t):
        base=SP[t]
        if base>=65536-16384:
            k(f"v_add_u32 v{t2}, {base}, v{vSW}\nv_add_u32 v{t3}, {base}, v{t4}"); a0,a1,b=t2,t3,0
        else: a0,a1,b=vSW,t4,base
        d=SA+8*ti
        k(f"ds_write_b128 v{a0}, v[{d}:{d+3}] offset:{b}\nds_write_b128 v{a1}, v[{d+4}:{d+7}] offset:{b}")
    def sread(tiles):
        for ti,t in enumerate(tiles):
            base=SP[t]
            if base>=65536-16384:
                k(f"v_add_u32 v{t2}, {base}, v{vSR}"); a,b=t2,0
            else: a,b=vSR,base
            for cq in range(4):
                d=SA+8*ti+2*cq
                k(f"ds_read_b64 v[{d}:{d+1}], v{a} offset:{b+4096*cq}")
        k("s_waitcnt lgkmcnt(0)")
        for ti,t in enumerate(tiles):
            d=SA+8*ti
            k(f"v_pk_add_f32 v[{d}:{d+1}], v[{d}:{d+1}], v[{d+2}:{d+3}]\nv_pk_add_f32 v[{d+4}:{d+5}], v[{d+4}:{d+5}], v[{d+6}:{d+7}]\nv_pk_add_f32 v[{d}:{d+1}], v[{d}:{d+1}], v[{d+4}:{d+5}]")
        k(f"v_max_f32 v{vMn}, v{SA}, v{SA+1}")
        for ti in range(1,len(tiles)): k(f"v_max3_f32 v{vMn}, v{vMn}, v{SA+8*ti}, v{SA+8*ti+1}")
        rowred("v_max_f32",vMn)
    def pwrite(tiles, first):
        for ti,t in enumerate(tiles):
            d=SA+8*ti
            k(f"v_sub_f32 v{d}, v{d}, v{vM}\nv_sub_f32 v{d+1}, v{d+1}, v{vM}\nv_exp_f32 v{d}, v{d}\nv_exp_f32 v{d+1}, v{d+1}")
        for ti,t in enumerate(tiles):
            d=SA+8*ti
            k(f"v_cvt_pk_bf16_f32 v{d+2}, v{d}, v{d+1}\nds_write_b32 v{vPW}, v{d+2} offset:{2560*t}")
            if first and ti==0: k(f"v_add_f32 v{vLs}, v{d}, v{d+1}")
            else: k(f"v_add_f32 v{vLs}, v{vLs}, v{d}\nv_add_f32 v{vLs}, v{vLs}, v{d+1}")
    def gemm2(tiles, first):
        for ti,t in enumerate(tiles):
            for hh in range(2):
                r=SA+8*ti+4*hh
                k(f"ds_read_b128 v[{r}:{r+3}], v{vPR} offset:{2560*t+1280*hh}")
        return
    def gemm2_mma(tiles, first):
        for ti,t in enumerate(tiles):
            k(f"s_waitcnt lgkmcnt({2*(len(tiles)-1-ti)})")
            for tau in range(4):
                for hh in range(2):
                    d=OA+16*hh+4*tau; a=TOP[t]+4*tau; b=SA+8*ti+4*hh
                    k(f"v_mfma_f32_16x16x32_bf16 v[{d}:{d+3}], v[{a}:{a+3}], v[{b}:{b+3}], {'0' if (first and ti==0) else f'v[{d}:{d+3}]'}")
    TA=[0,1,2]
    gemm1(TA)
    k("s_waitcnt lgkmcnt(0)\ns_barrier")
    sread(TA)
    k(f"v_ceil_f32 v{vM}, v{vMn}")
    pwrite(TA,True)
    k("s_waitcnt lgkmcnt(0)\ns_barrier")
    gemm2(TA,True); gemm2_mma(TA,True)
    stamp(6)
    k("s_waitcnt vmcnt(4)\ns_barrier")
    stamp(7)
    pull(3)
    k("s_waitcnt lgkmcnt(8)")
    gemm1([3])
    k("s_waitcnt lgkmcnt(0)\ns_barrier")
    sread([3])
    k(f"v_add_f32 v{tmp}, {f32(T)}, v{vM}\nv_cmp_gt_f32 vcc, v{vMn}, v{tmp}\nv_ceil_f32 v{vMn}, v{vMn}\nv_cndmask_b32 v{vMn}, v{vM}, v{vMn}, vcc\nv_sub_f32 v{tmp}, v{vM}, v{vMn}\nv_exp_f32 v{tmp}, v{tmp}\nv_mov_b32 v{vM}, v{vMn}\nv_mul_f32 v{vLs}, v{vLs}, v{tmp}")
    k(f"s_lshl_b32 s33, s3, 4\ns_add_u32 s33, s33, {FB}\nv_lshl_add_u32 v{t5}, v3, 2, s33\nds_write_b32 v{t5}, v{tmp}")
    pwrite([3],False)
    k("s_waitcnt lgkmcnt(0)\ns_barrier")
    k(f"v_lshlrev_b32 v{t5}, 2, v2\nv_add_u32 v{t5}, {FB}, v{t5}\nds_read2_b32 v[{vF0}:{vF1}], v{t5} offset0:0 offset1:16")
    gemm2([3],False)
    rowred("v_add_f32",vLs)
    k("s_waitcnt lgkmcnt(2)")
    k(f"v_min_f32 v{tmp}, v{vF0}, v{vF1}\nv_cmp_neq_f32 vcc, 1.0, v{tmp}\ns_cmp_lg_u64 vcc, 0\ns_cbranch_scc0 L_k_norescale")
    for hh in range(2):
        for r in range(16): k(f"v_mul_f32 v{OA+16*hh+r}, v{vF0+hh}, v{OA+16*hh+r}")
    k("L_k_norescale:")
    gemm2_mma([3],False)
    k(f"v_min_u32 v{vM}, -2, v{vM}\nv_min_u32 v{vLs}, -2, v{vLs}\nv_mov_b32 v{t2}, v{vM}\nv_mov_b32 v{t3}, v{vLs}\nv_lshlrev_b32 v{t4}, 13, v3\ns_mov_b32 exec_lo, 0x00010001\ns_mov_b32 exec_hi, 0x00010001\nbuffer_store_dwordx2 v[{t2}:{t3}], v{t4}, s[40:43], s62 offen sc1\ns_mov_b64 exec, -1")
    for pi in range(2):
        for hh in range(2):
            q=16+8*pi+4*hh; d=OA+16*hh+8*pi
            k(f"v_cvt_pk_bf16_f32 v{q}, v{d}, v{d+1}\nv_cvt_pk_bf16_f32 v{q+1}, v{d+2}, v{d+3}\nv_cvt_pk_bf16_f32 v{q+2}, v{d+4}, v{d+5}\nv_cvt_pk_bf16_f32 v{q+3}, v{d+6}, v{d+7}")
            for r in range(4): k(f"v_min_u32 v{q+r}, -2, v{q+r}")
            k(f"v_permlane16_swap_b32 v{q}, v{q+2}\nv_permlane16_swap_b32 v{q+1}, v{q+3}")
            k(f"buffer_store_dwordx4 v[{q}:{q+3}], v{vST}, s[40:43], s{60+hh} offen offset:{64*pi} sc1")
    stamp(8)
    GD=48; GS=64; WV=80; AC=96; WL=104; WH=108
    k(f"s_lshl_b32 s68, s28, 15\ns_lshl_b32 s33, s3, 12\ns_add_u32 s68, s68, s33\ns_add_u32 s68, s68, {H3}")
    k(f"s_lshl_b32 s69, s30, 13\ns_lshl_b32 s33, s3, 10\ns_add_u32 s69, s69, s33\ns_add_u32 s69, s69, {STAT}\nv_lshlrev_b32 v{t4}, 6, v3")
    k(f"v_lshrrev_b32 v{t2}, 2, v2\nv_and_b32 v{t3}, 1, v3\nv_lshl_add_u32 v{t3}, v{t3}, 2, v{t2}\nv_lshl_add_u32 v{t2}, v3, 2, v{t2}\nv_bfe_u32 v{t5}, v2, 1, 1\ns_lshl_b32 s33, s3, 1\nv_add_u32 v{t5}, s33, v{t5}\nv_lshlrev_b32 v{t3}, 1, v{t3}\nv_xor_b32 v{t5}, v{t5}, v{t3}\nv_lshlrev_b32 v{t5}, 4, v{t5}\nv_lshl_add_u32 v{t5}, v{t2}, 8, v{t5}\nv_and_b32 v{t3}, 1, v2\nv_lshl_add_u32 v{t5}, v{t3}, 3, v{t5}\nv_add_u32 v{t5}, {WUV}, v{t5}")
    k(f"v_and_b32 v{t2}, 1, v3\ns_lshl_b32 s33, s3, 1\nv_add_u32 v{t2}, s33, v{t2}\nv_mul_u32_u24 v{vSW}, 0x120, v{t2}\nv_lshrrev_b32 v{t2}, 2, v2\nv_lshl_add_u32 v{vSW}, v{t2}, 6, v{vSW}\nv_lshl_add_u32 v{vSW}, v{t3}, 5, v{vSW}\nv_lshrrev_b32 v{t2}, 1, v3\nv_lshl_add_u32 v{vSW}, v{t2}, 4, v{vSW}\nv_bfe_u32 v{t2}, v2, 1, 1\nv_lshl_add_u32 v{vSW}, v{t2}, 3, v{vSW}")
    k(f"v_mul_u32_u24 v{vSR}, 0x120, v2\nv_lshl_add_u32 v{vSR}, v3, 4, v{vSR}")
    k(f"v_lshlrev_b32 v{vPR}, 4, v3\nv_add_u32 v{vPR}, {STB}, v{vPR}\ns_lshl_b32 s33, s3, 3\ns_add_u32 s33, s33, {STB}\nv_mov_b32 v{vPW}, s33")
    k("s_waitcnt vmcnt(0)\ns_barrier")
    k("s_mov_b64 s[70:71], -1\ns_mov_b64 s[72:73], -1\ns_mov_b64 s[74:75], -1\ns_mov_b64 s[76:77], -1")
    first=True
    k("L_k_g:")
    for n in range(4):
        k(f"s_mov_b64 exec, s[{70+2*n}:{71+2*n}]\ns_cbranch_execz L_k_gs{n}")
        k(f"buffer_load_dwordx4 v[{GD+4*n}:{GD+4*n+3}], v{vDM}, s[40:43], s68 offen offset:{1024*n} sc1\nbuffer_load_dwordx2 v[{GS+2*n}:{GS+2*n+1}], v{t4}, s[40:43], s69 offen offset:{256*n} sc1")
        k(f"L_k_gs{n}:")
    k("s_mov_b64 exec, -1")
    for s in range(4):
        k(f"ds_read_b64_tr_b16 v[{WV+4*s}:{WV+4*s+1}], v{t5} offset:{8192*s}\nds_read_b64_tr_b16 v[{WV+4*s+2}:{WV+4*s+3}], v{t5} offset:{8192*s+4096}")
    k("s_waitcnt vmcnt(0)")
    for n in range(4):
        r=GD+4*n
        k(f"v_max3_u32 v{tmp}, v{r}, v{r+1}, v{r+2}\nv_max3_u32 v{t2}, v{r+3}, v{GS+2*n}, v{GS+2*n+1}\nv_max_u32 v{tmp}, v{tmp}, v{t2}\nv_cmp_eq_u32 s[{70+2*n}:{71+2*n}], -1, v{tmp}")
    k("s_or_b64 s[78:79], s[70:71], s[72:73]\ns_or_b64 s[78:79], s[78:79], s[74:75]\ns_or_b64 s[78:79], s[78:79], s[76:77]")
    if diag: k("s_cselect_b32 s33, 0x10000, 0\ns_add_u32 s98, s98, s33\ns_cmp_lg_u32 s33, 0")
    spin_retry("L_k_g","L_k_gok")
    if diag: k("s_memrealtime s[96:97]\ns_waitcnt lgkmcnt(0)\ns_mov_b32 s99, s96") if False else None
    k(f"v_max3_f32 v{vM}, v{GS}, v{GS+2}, v{GS+4}\nv_max_f32 v{vM}, v{vM}, v{GS+6}")
    xgrp("v_max_f32",vM,tmp)
    for n in range(4): k(f"v_sub_f32 v{WL+n}, v{GS+2*n}, v{vM}\nv_exp_f32 v{WL+n}, v{WL+n}")
    for n in range(4): k(f"v_cvt_pk_bf16_f32 v{WL+n}, v{WL+n}, 0\nv_lshlrev_b32 v{WH+n}, 16, v{WL+n}")
    for n in range(4):
        for d in range(4):
            c0='0' if n==0 else f"v{AC+2*d}"; c1='0' if n==0 else f"v{AC+2*d+1}"
            k(f"v_dot2_f32_bf16 v{AC+2*d}, v{GD+4*n+d}, v{WL+n}, {c0}\nv_dot2_f32_bf16 v{AC+2*d+1}, v{GD+4*n+d}, v{WH+n}, {c1}")
    k(f"v_mul_f32 v{vLs}, v{WH}, v{GS+1}")
    for n in range(1,4): k(f"v_fmac_f32 v{vLs}, v{WH+n}, v{GS+2*n+1}")
    for e in range(4): k(f"v_permlane32_swap_b32 v{AC+e}, v{AC+e+4}")
    for e in range(4): k(f"v_add_f32 v{AC+e}, v{AC+e}, v{AC+e+4}")
    k(f"v_cvt_pk_bf16_f32 v{AC}, v{AC}, v{AC+1}\nv_cvt_pk_bf16_f32 v{AC+1}, v{AC+2}, v{AC+3}\nds_write_b64 v{vSW}, v[{AC}:{AC+1}] offset:{ACC}")
    xgrp("v_add_f32",vLs,tmp)
    k(f"v_mov_b32 v{t2}, v{vM}\nv_mov_b32 v{t3}, v{vLs}\ns_mov_b64 exec, 1\nds_write_b64 v{vPW}, v[{t2}:{t3}]\ns_mov_b64 exec, -1\ns_waitcnt lgkmcnt(0)\ns_barrier")
    k(f"ds_read_b128 v[{GS}:{GS+3}], v{vPR}")
    for s in range(4): k(f"ds_read_b128 v[{GD+4*s}:{GD+4*s+3}], v{vSR} offset:{ACC+64*s}")
    k("s_waitcnt lgkmcnt(4)")
    k(f"v_max_f32 v{vM}, v{GS}, v{GS+2}")
    xgrp("v_max_f32",vM,tmp)
    for s in range(4):
        k(f"s_waitcnt lgkmcnt({3-s})\nv_mfma_f32_16x16x32_bf16 v[{AC}:{AC+3}], v[{GD+4*s}:{GD+4*s+3}], v[{WV+4*s}:{WV+4*s+3}], {'0' if s==0 else f'v[{AC}:{AC+3}]'}")
    k(f"v_sub_f32 v{GS}, v{GS}, v{vM}\nv_sub_f32 v{GS+2}, v{GS+2}, v{vM}\nv_exp_f32 v{GS}, v{GS}\nv_exp_f32 v{GS+2}, v{GS+2}\nv_mul_f32 v{vLs}, v{GS}, v{GS+1}\nv_fmac_f32 v{vLs}, v{GS+2}, v{GS+3}")
    xgrp("v_add_f32",vLs,tmp)
    k(f"v_rcp_f32 v{vLs}, v{vLs}\nv_lshlrev_b32 v{t3}, 2, v2")
    k(f"v_add_f32 v{AC}, v{AC}, v{AC+1}\nv_add_f32 v{AC+2}, v{AC+2}, v{AC+3}\nv_mul_f32 v{AC}, v{AC}, v{GS}\nv_fmac_f32 v{AC}, v{AC+2}, v{GS+2}")
    xgrp("v_add_f32",AC,tmp)
    k(f"v_mul_f32 v{AC}, v{AC}, v{vLs}\nv_min_u32 v{AC}, -2, v{AC}\ns_mov_b64 exec, 0xffff\nbuffer_store_dword v{AC}, v{t3}, s[40:43], s63 offen sc1\ns_mov_b64 exec, -1")
    if diag: k("s_memrealtime s[82:83]\ns_waitcnt lgkmcnt(0)")
    k("s_cmp_lg_u32 s3, 0\ns_cbranch_scc1 L_fin\ns_cmp_ge_u32 s28, 80\ns_cbranch_scc1 L_fin")
    k.srd(44,4,SIZES[0]); k.srd(48,22,SIZES[9])
    k(f"v_and_b32 v{t2}, 1, v2\nv_lshlrev_b32 v{t2}, 3, v{t2}\nv_lshl_add_u32 v{t2}, v3, 1, v{t2}\ns_lshl_b32 s34, s28, 4\nbuffer_load_ushort v{t3}, v{t2}, s[44:47], s34 offen")
    k(f"s_lshl_b32 s68, s28, 13\ns_add_u32 s68, s68, {H5}\ns_add_u32 s69, s68, 4096")
    k("L_k_r:")
    for n in range(8): k(f"buffer_load_dwordx4 v[{16+4*n}:{19+4*n}], v{vDM}, s[40:43], s{68+(n>>2)} offen offset:{1024*(n&3)} sc1")
    k("s_mov_b64 exec, -1\ns_waitcnt vmcnt(0)")
    k(f"v_max_u32 v{tmp}, v16, v17")
    for r in range(18,48,2): k(f"v_max3_u32 v{tmp}, v{tmp}, v{r}, v{r+1}")
    k(f"v_cmp_eq_u32 vcc, -1, v{tmp}\ns_cmp_lg_u64 vcc, 0\ns_cbranch_scc0 L_k_rok\ns_mov_b64 exec, vcc")
    spin_retry("L_k_r","L_k_rok")
    k("s_mov_b64 exec, -1")
    if diag: k("s_memrealtime s[84:85]\ns_waitcnt lgkmcnt(0)")
    for st in (16,8,4):
        for q in range(0,st,2): k(f"v_pk_add_f32 v[{16+q}:{17+q}], v[{16+q}:{17+q}], v[{16+q+st}:{17+q+st}]")
    k("v_permlane32_swap_b32 v16, v18\nv_permlane32_swap_b32 v17, v19\nv_add_f32 v16, v16, v18\nv_add_f32 v17, v17, v19\nv_permlane16_swap_b32 v16, v17\nv_add_f32 v16, v16, v17")
    k(f"v_add_f32 v16, v16, v16 row_ror:4 {DPP}\nv_add_f32 v16, v16, v16 row_ror:8 {DPP}")
    rb(16,16)
    k(f"v_mov_b32 v17, v16 quad_perm:[2,3,0,1] {DPP}")
    k(f"v_mul_f32 v18, {f32(-math.log2(math.e))}, v17\nv_exp_f32 v18, v18\nv_add_f32 v18, 1.0, v18\nv_rcp_f32 v18, v18\nv_mul_f32 v18, v17, v18")
    rb(18,18)
    k("v_mul_f32 v18, v16, v18"); rb(18,18)
    k(f"v_lshlrev_b32 v{t3}, 16, v{t3}\nv_add_f32 v18, v18, v{t3}\nv_cvt_pk_bf16_f32 v18, v18, v18")
    k(f"s_mov_b32 exec_lo, 0x00030003\ns_mov_b32 exec_hi, 0x00030003\nbuffer_store_short v18, v{t2}, s[48:51], s34 offen")
    k("s_cmp_lg_u32 s28, 0\ns_cbranch_scc1 L_fin")
    k(f"s_mov_b64 exec, 1\nv_mov_b32 v16, s29\nbuffer_store_dword v16, v{vDM}, s[40:43], 0 offen sc1")
    k("L_fin:")
    if diag:
        k("s_waitcnt vmcnt(0)\ns_mov_b64 exec, 1")
        k("s_cmp_eq_u32 s86, 0\ns_cbranch_scc1 L_nost3")
        k("L_nost3:")
        k(f"s_lshl_b32 s32, s2, 3\ns_add_u32 s32, s32, s3\ns_mul_i32 s32, s32, {(NST+1)*8}\ns_add_u32 s32, s32, {STAMP}\nv_mov_b32 v3, 0")
        k("s_memrealtime s[100:101]\ns_waitcnt lgkmcnt(0)")
        for i in range(NST+1):
            k(f"v_mov_b32 v4, s{80+2*i}\nv_mov_b32 v5, s{81+2*i}\nbuffer_store_dwordx2 v[4:5], v3, s[40:43], s32 offen offset:{8*i}")
    k("L_end:\ns_endpgm")
    k.L=hz.process(k.L)
    hdr=open("cdna_kernels/"+NAME+".s.ref").read().split("; Override")[0].rstrip("\n").split("\n")
    return assemble_file(hdr+[f"; @launch grid=(256,1,1) block=(512,1,1) lds=163840"], [(k,256,102,256)])
if __name__=="__main__":
    open("k_diag.s","w").write(gen(diag=True))
    open("k_prod.s","w").write(gen(diag=False))
```

```python
import sys, math, struct, json, shutil
from kit import *
import hz
DPP="row_mask:0xf bank_mask:0xf"
def f32(x): return "0x%08x"%struct.unpack("<I",struct.pack("<f",x))[0]
def lines(s): return [l for l in s.strip("\n").split("\n") if l.strip()]
def interleave(A,B,lead=0,ratio=None):
    out=list(A[:lead]); A=A[lead:]
    if not A: return out+B
    r=ratio or len(B)/len(A); acc=0.0; bi=0
    for a in A:
        acc+=r
        while bi<len(B) and bi<acc-1e-9: out.append(B[bi]); bi+=1
        out.append(a)
    return out+B[bi:]
EPOCH=0x0; FLAG=0x1000; H1=0x10000; H2=0x40000; H4=0x50000; H5=0x80000; H5Y=0x120000; STAT=0x1C0000; H3=0x200000; TRIG=0x74000; HINT=0x70000; H1A=0x600000; H4A=0x640000
STAMP=0x1000000; WS_SIZE=0x2000000
def gen(diag=False, RB=3, T=16.0, spin=1<<16, probe=None, pmul=4, codepf=True, deep=True, fine=False, wsbase=0, uksplit=2, pretouch=True, trig=None, kvdelay=0, hintpos=0, win=0, ffnearly=True, nokv=0, noclear=False, dual=True, qpos=12, flpos=8, na=6, kvstart='ack', pre=0, h5gate=True, hintwave=7, hintl2=False):
    k=Kern()
    names={}
    def stamp(nm, lvl=0):
        if probe is not None and nm==probe:
            k("s_memrealtime s[84:85]\ns_waitcnt lgkmcnt(0)\ns_or_b32 s84, s84, 1")
        if not diag or (lvl and not fine): return
        i=len(names)+1; names[nm]=i
        k(f"s_memrealtime s[80:81]\ns_waitcnt lgkmcnt(0)\nv_writelane_b32 v255, s80, {i}")
    def rowred_l(op,x): return [f"{op} v{x}, v{x}, v{x} row_ror:{r} {DPP}" for r in (8,4,2,1)]
    def xgrp_l(op,x,t): return lines(f"v_mov_b32 v{t}, v{x}\nv_permlane16_swap_b32 v{x}, v{t}\n{op} v{x}, v{x}, v{t}\nv_mov_b32 v{t}, v{x}\nv_permlane32_swap_b32 v{x}, v{t}\n{op} v{x}, v{x}, v{t}")
    def xgrp(op,x,t): k("\n".join(xgrp_l(op,x,t)))
    def zipl(a,b): return [x for p in zip(a,b) for x in p]
    def rb(d,s): k(f"v_cvt_pk_bf16_f32 v{d}, v{s}, v{s}\nv_and_b32 v{d}, 0xffff0000, v{d}")
    def spin_retry(lbl, done):
        k(f"s_cbranch_scc0 {done}\ns_sub_u32 s39, s39, 1\ns_cbranch_scc0 {lbl}\ns_mov_b32 s39, 0\n{done}:")
    def srd(b,idx): k(f"s_mov_b32 s{b}, s{4+2*idx}\ns_and_b32 s{b+1}, s{5+2*idx}, 0xffff\ns_mov_b32 s{b+2}, {SIZES[idx]}")
    def ws_setup():
        k("s_waitcnt lgkmcnt(0)")
        if wsbase: k(f"s_add_u32 s26, s26, {wsbase}\ns_addc_u32 s27, s27, 0")
        k(f"s_load_dword s29, s[26:27], {EPOCH}\ns_mov_b32 s40, s26\ns_and_b32 s41, s27, 0xffff")
    def ln_load(xr):
        srd(52,0)
        k("v_lshlrev_b32 v4, 2, v1")
        for n in range(5): k(f"buffer_load_dword v{xr+n}, v4, s[52:55], 0 offen offset:{256*n}")
    def ln_stats(xr,tr,XR,CF,wait):
        a=tr; s0=tr+10; q0=tr+12; c0=tr+14
        k(f"v_and_b32 v4, 0x31, v1\nv_and_b32 v5, 6, v1\nv_lshl_or_b32 v4, v5, 1, v4\nv_bfe_u32 v5, v1, 3, 1\nv_lshl_or_b32 v4, v5, 1, v4\nv_lshlrev_b32 v4, 2, v4\nv_add_u32 v4, {XR}, v4")
        k(wait)
        for n in range(5): k(f"ds_write_b32 v4, v{xr+n} offset:{256*n}")
        k(f"v_readfirstlane_b32 s37, v{xr}\ns_lshl_b32 s37, s37, 16")
        for n in range(5): k(f"v_lshlrev_b32 v{a+2*n}, 16, v{xr+n}\nv_and_b32 v{a+1+2*n}, 0xffff0000, v{xr+n}")
        for n in range(10): k(f"v_subrev_f32 v{a+n}, s37, v{a+n}")
        k(f"v_pk_add_f32 v[{s0}:{s0+1}], v[{a}:{a+1}], v[{a+2}:{a+3}]\nv_pk_mul_f32 v[{q0}:{q0+1}], v[{a}:{a+1}], v[{a}:{a+1}]")
        for n in range(1,5):
            if n>1: k(f"v_pk_add_f32 v[{s0}:{s0+1}], v[{s0}:{s0+1}], v[{a+2*n}:{a+1+2*n}]")
            k(f"v_pk_fma_f32 v[{q0}:{q0+1}], v[{a+2*n}:{a+1+2*n}], v[{a+2*n}:{a+1+2*n}], v[{q0}:{q0+1}]")
        k(f"v_add_f32 v{s0}, v{s0}, v{s0+1}\nv_add_f32 v{q0}, v{q0}, v{q0+1}")
        k("\n".join(zipl(rowred_l("v_add_f32",s0),rowred_l("v_add_f32",q0))))
        k("\n".join(zipl(xgrp_l("v_add_f32",s0,s0+1),xgrp_l("v_add_f32",q0,q0+1))))
        k(f"v_mul_f32 v{s0}, {f32(1/640)}, v{s0}\nv_mul_f32 v{q0}, {f32(1/640)}, v{q0}\nv_fma_f32 v{q0}, -v{s0}, v{s0}, v{q0}\nv_max_f32 v{q0}, 0, v{q0}\nv_add_f32 v{s0}, s37, v{s0}")
        k(f"v_cvt_pk_bf16_f32 v{s0}, v{s0}, v{q0}\nv_and_b32 v{q0}, 0xffff0000, v{s0}\nv_lshlrev_b32 v{s0}, 16, v{s0}")
        k(f"v_add_f32 v{q0}, {f32(1e-5)}, v{q0}"); rb(q0,q0)
        k(f"v_sqrt_f32 v{q0}, v{q0}"); rb(q0,q0)
        k(f"v_rcp_f32 v{c0}, v{q0}\nv_mov_b32 v5, {CF}\nv_mul_f32 v{c0+1}, v{s0}, v{c0}\nv_xor_b32 v{c0+1}, 0x80000000, v{c0+1}\nds_write_b64 v5, v[{c0}:{c0+1}]")
    def ones(ONES,n=5):
        k(f"v_mov_b32 v5, 0x3f803f80\nv_lshlrev_b32 v4, 2, v1\nv_add_u32 v4, {ONES}, v4")
        for j in range(n): k(f"ds_write_b32 v4, v5 offset:{256*j}")
    def task_voff(dst,ta,tb,tc):
        k("s_and_b32 s37, s3, 1\ns_lshl_b32 s37, s37, 2")
        for n in range(5):
            k(f"v_add_u32 v{ta}, {4*n}, v3\nv_mul_u32_u24 v{ta}, 13, v{ta}\nv_lshrrev_b32 v{ta}, 6, v{ta}")
            k(f"v_mul_u32_u24 v{tb}, 0x500, v{ta}\nv_add_u32 v{tc}, {1024*n}, v12\nv_sub_u32 v{tc}, v{tc}, v{tb}\nv_add_u32 v{ta}, s37, v{ta}\nv_lshlrev_b32 v{ta}, 5, v{ta}\nv_xor_b32 v{tc}, v{tc}, v{ta}\nv_add_u32 v{dst+n}, v{tb}, v{tc}")
    def tr1280(dst,ta,tb):
        k(f"v_lshrrev_b32 v{ta}, 2, v2\nv_and_b32 v{tb}, 1, v3\nv_lshl_add_u32 v{tb}, v{tb}, 2, v{ta}\nv_lshl_add_u32 v{ta}, v3, 2, v{ta}\nv_mul_u32_u24 v{dst}, 0x500, v{ta}\nv_bfe_u32 v{ta}, v2, 1, 1\nv_xor_b32 v{tb}, v{ta}, v{tb}\nv_lshl_add_u32 v{dst}, v{tb}, 5, v{dst}\nv_and_b32 v{tb}, 1, v2\nv_lshl_add_u32 v{dst}, v{tb}, 4, v{dst}\ns_lshl_b32 s37, s3, 8\nv_add_u32 v{dst}, s37, v{dst}")
    def tr1280x(dst,base):
        k(f"v_xor_b32 v{dst+1}, 64, v{dst}\nv_xor_b32 v{dst+2}, 0x80, v{dst}\nv_xor_b32 v{dst+3}, 0xc0, v{dst}")
        for r in range(4): k(f"v_add_u32 v{dst+r}, {base}, v{dst+r}")
    def h5voff(dst,ta,tb):
        k(f"v_and_b32 v{ta}, 12, v2\nv_add_u32 v{ta}, v{ta}, v3\nv_lshlrev_b32 v{dst}, 13, v{ta}\nv_and_b32 v{tb}, 3, v2\nv_lshl_add_u32 v{dst}, v{tb}, 4, v{dst}")
    def h5store(acc,stg,voff,soff):
        k(f"s_mov_b32 vcc_lo, 0xaaaaaaaa\ns_mov_b32 vcc_hi, 0xaaaaaaaa\nv_mov_b32 v{stg+1}, s29\nv_mov_b32 v{stg+3}, s29")
        k(f"v_cndmask_b32 v{stg}, v{acc}, v{acc+2}, vcc\nv_cndmask_b32 v{stg+2}, v{acc+1}, v{acc+3}, vcc\nbuffer_store_dwordx4 v[{stg}:{stg+3}], v{voff}, s[40:43], s{soff} offen sc1")
    def colmask(n):
        m=3<<(2*n); m|=m<<16
        return f"s_mov_b32 exec_lo, {m:#x}\ns_mov_b32 exec_hi, {m:#x}"
    if diag: k("s_memrealtime s[82:83]\nv_mov_b32 v255, 0\ns_mov_b32 s98, 0")
    if probe is not None: k("s_memrealtime s[82:83]\ns_mov_b32 s84, 0")
    k("s_cmp_ge_u32 s2, 256\ns_cbranch_scc1 L_end")
    k("s_load_dwordx16 s[4:19], s[0:1], 0\ns_load_dwordx8 s[20:27], s[0:1], 64")
    k("v_lshrrev_b32 v4, 6, v0\nv_and_b32 v1, 63, v0\nv_readfirstlane_b32 s3, v4\nv_and_b32 v2, 15, v1\nv_lshrrev_b32 v3, 4, v1\nv_lshlrev_b32 v12, 4, v1")
    assert RB==3
    k("s_and_b32 s30, s2, 7\ns_lshr_b32 s31, s2, 6\ns_lshl_b32 s31, s31, 3\ns_or_b32 s30, s30, s31\ns_lshr_b32 s31, s2, 4\ns_and_b32 s31, s31, 3\ns_lshl_b32 s28, s30, 2\ns_or_b32 s28, s28, s31")
    k(f"s_mov_b32 s39, {spin}\ns_mov_b32 s42, {WS_SIZE}\ns_mov_b32 s43, 0x20000\ns_mov_b32 s47, 0x20000\ns_mov_b32 s51, 0x20000\ns_mov_b32 s55, 0x20000\ns_mov_b32 s59, 0x20000")
    vDM=12
    k(f"s_bitcmp1_b32 s2, {RB}\ns_cbranch_scc1 L_KV")
    WQ=0; WUK=40960; XR=73728; ONES=XR+1280; CF=ONES+1280; QV=CF+64; QA=QV+256; STB=QA+256; CX=STB+64; ACC=CX+64
    assert ACC%16==0 and ACC+16*288<=82944
    WUV=82944; WO=WUV+32768; W1=0; W2=20480; HP=WUK
    assert WO+40960<=163840
    k("s_and_b32 s33, s3, 1\ns_lshl_b32 s33, s33, 2\nv_add_u32 v5, s33, v3\nv_lshlrev_b32 v5, 1, v5\nv_xor_b32 v5, v5, v2\nv_lshlrev_b32 v5, 4, v5\nv_lshl_add_u32 v6, v3, 13, v5")
    k("s_mul_i32 s32, s31, 160\ns_lshl_b32 s35, s3, 2\ns_add_u32 s32, s32, s35\ns_lshl_b32 s32, s32, 13\ns_lshl_b32 s34, s30, 8\ns_add_u32 s32, s32, s34\ns_lshl_b32 s33, s3, 10")
    k("s_lshl_b32 s36, s31, 7\ns_add_u32 s36, s36, s35\ns_lshl_b32 s36, s36, 13\ns_add_u32 s36, s36, s34")
    k(f"s_lshl_b32 s64, s30, 12\ns_add_u32 s64, s64, {H1}")
    ws_setup()
    srd(44,2)
    k("s_cmp_eq_u32 s3, 5\ns_cbranch_scc0 L_w_not_ln")
    ln_load(16)
    k("L_w_not_ln:")
    for n in range(5):
        k(f"s_add_u32 m0, s33, {WQ+8192*n}")
        if n: k(f"s_add_u32 s32, s32, {32*8192}")
        k(f"buffer_load_dwordx4 v6, s[44:47], s32 offen lds")
    srd(48,3)
    k("s_mov_b32 s38, s36\ns_barrier")
    def ukdma(n):
        k(f"s_add_u32 m0, s33, {WUK+8192*n}")
        if n: k(f"s_add_u32 s38, s38, {32*8192}")
        k(f"buffer_load_dwordx4 v6, s[48:51], s38 offen lds")
    nx=1
    k("s_cmp_ge_u32 s3, 4\ns_cbranch_scc1 L_w_cpf")
    k(f"s_add_u32 s37, s64, s33\ns_add_u32 s37, s37, {H1A-H1 if dual else 0}\nbuffer_load_dwordx4 v[100:103], v{vDM}, s[40:43], s37 offen sc1")
    k("s_branch L_w_cpfd\nL_w_cpf:")
    k(f"s_getpc_b64 s[60:61]\ns_add_u32 s60, s60, s33\ns_addc_u32 s61, s61, 0\nglobal_load_dwordx4 v[100:103], v{vDM}, s[60:61] offset:-3584")
    k("L_w_cpfd:")
    for n in range(uksplit): ukdma(n)
    Y=nx+uksplit
    k("v_lshrrev_b32 v7, 2, v2\nv_and_b32 v14, 1, v3\nv_lshl_add_u32 v14, v14, 2, v7\nv_lshl_add_u32 v7, v3, 2, v7")
    k("v_bfe_u32 v15, v2, 1, 1\ns_lshl_b32 s37, s3, 1\nv_add_u32 v15, s37, v15\nv_lshlrev_b32 v28, 1, v14\nv_xor_b32 v15, v15, v28\nv_lshlrev_b32 v15, 4, v15")
    k("v_lshl_add_u32 v15, v7, 8, v15\nv_and_b32 v13, 1, v2\nv_lshl_add_u32 v15, v13, 3, v15")
    k(f"v_lshlrev_b32 v28, 4, v3\nv_mul_u32_u24 v29, 0x500, v13\ns_mul_i32 s37, s31, 320\ns_add_u32 s37, s37, {XR}\nv_add3_u32 v29, v29, v28, s37")
    k(f"v_lshlrev_b32 v31, 2, v13\nv_add_u32 v31, {CF}, v31\nv_add_u32 v28, {QV}, v28")
    k("v_lshlrev_b32 v30, 5, v3\nv_lshl_add_u32 v30, v13, 4, v30\nv_cmp_eq_u32 s[62:63], 1, v13")
    k(f"s_lshl_b32 s32, s28, 10\ns_lshl_b32 s37, s3, 7\ns_add_u32 s32, s32, s37\ns_add_u32 s32, s32, {H1}")
    k(f"v_and_b32 v5, 7, v2\nv_lshlrev_b32 v5, 1, v5\nv_xor_b32 v5, v5, v3\nv_lshlrev_b32 v5, 4, v5\nv_lshl_add_u32 v92, v2, 8, v5\ns_lshl_b32 s37, s3, 12\nv_add_u32 v92, s37, v92")
    k("v_xor_b32 v93, 64, v92\nv_xor_b32 v94, 0x80, v92\nv_xor_b32 v95, 0xc0, v92")
    k(f"s_lshl_b32 s37, s3, 5\ns_add_u32 s37, s37, {QA}\nv_lshl_add_u32 v96, v3, 3, s37\ns_mov_b32 s34, {f32(128**-0.5*math.log2(math.e))}")
    k(f"s_lshl_b32 s35, s28, 8\ns_add_u32 s35, s35, {H2}\nv_add_u32 v97, {QA}, v{vDM}\nv_lshlrev_b32 v98, 2, v1\nv_add_u32 v98, {QV}, v98\ns_add_u32 s66, s32, {H1A-H1}\ns_add_u32 s67, s64, {H1A-H1}\ns_mov_b32 s68, 0")
    k("s_cmp_eq_u32 s3, 5\ns_cbranch_scc0 L_w_ln_done")
    ln_stats(16,32,XR,CF,f"s_waitcnt vmcnt({5+Y})")
    stamp("W LN done",1)
    k("L_w_ln_done:")
    k("s_cmp_eq_u32 s3, 6\ns_cbranch_scc0 L_w_not6")
    ones(ONES)
    k("L_w_not6:")
    k("s_waitcnt lgkmcnt(0)\ns_add_u32 s29, s29, 1\nv_mov_b32 v9, s29\nv_mov_b32 v11, s29")
    stamp("W issued",1)
    k(f"s_waitcnt vmcnt({Y})")
    stamp("W own wq",1)
    k("s_barrier")
    stamp("W wq landed")
    for t in range(5):
        k(f"ds_read_b64_tr_b16 v[{48+4*t}:{49+4*t}], v15 offset:{8192*t}\nds_read_b64_tr_b16 v[{50+4*t}:{51+4*t}], v15 offset:{8192*t+4096}\nds_read_b128 v[{68+4*t}:{71+4*t}], v29 offset:{64*t}")
    for n in range(uksplit,4): ukdma(n)
    for t in range(5):
        k(f"s_waitcnt lgkmcnt({[12,10,7,4,1][t]})")
        if t==0: k("ds_read_b32 v27, v31")
        k(f"v_mfma_f32_16x16x32_bf16 v[88:91], v[{48+4*t}:{51+4*t}], v[{68+4*t}:{71+4*t}], {'0' if t==0 else 'v[88:91]'}")
    k("s_waitcnt lgkmcnt(0)")
    for r in range(4): k(f"v_mul_f32 v{88+r}, v27, v{88+r}")
    for r in range(4): k(f"v_add_f32 v{88+r}, v{88+r}, v{88+r} quad_perm:[1,0,3,2] {DPP}")
    k("s_mov_b32 exec_lo, 0x00030003\ns_mov_b32 exec_hi, 0x00030003")
    k("v_cndmask_b32 v8, v88, v90, s[62:63]\nv_cndmask_b32 v10, v89, v91, s[62:63]")
    assert dual
    EX2="s_mov_b32 exec_lo, 0x00030003\ns_mov_b32 exec_hi, 0x00030003"
    if dual:
        k("buffer_store_dwordx4 v[8:11], v30, s[40:43], s66 offen\ns_cmp_eq_u32 s3, 0\ns_cbranch_scc1 L_w_h1p\ns_cmp_eq_u32 s3, 7\ns_cbranch_scc1 L_w_fk")
        k("buffer_store_dwordx4 v[8:11], v30, s[40:43], s32 offen sc1\ns_mov_b64 exec, -1")
        stamp("W H1 pub",1)
        k("s_waitcnt vmcnt(2)\ns_branch L_w_h1other")
        k(f"L_w_fk:\ns_lshl_b32 s37, s28, 7\ns_add_u32 s37, s37, {FLAG}\nbuffer_load_dword v99, v{vDM}, s[40:43], s37 offen sc1\nbuffer_store_dwordx4 v[8:11], v30, s[40:43], s32 offen sc1\ns_mov_b64 exec, -1\ns_waitcnt vmcnt(3)\ns_branch L_w_h1other")
        k("L_w_h1p:\ns_mov_b64 exec, -1\ns_mov_b32 s69, s67")
    else:
        k("buffer_store_dwordx4 v[8:11], v30, s[40:43], s32 offen sc1\ns_mov_b64 exec, -1")
        stamp("W H1 pub",1)
        k("s_cmp_eq_u32 s3, 0\ns_cbranch_scc1 L_w_h1p\ns_waitcnt vmcnt(1)\ns_branch L_w_h1other\nL_w_h1p:\ns_mov_b32 s69, s64")
    k("L_w_h1:")
    for p in range(4): k(f"buffer_load_dwordx4 v[{48+4*p}:{51+4*p}], v{vDM}, s[40:43], s69 offen offset:{1024*p} sc1")
    k("s_waitcnt vmcnt(0)")
    k("v_xor_b32 v5, v49, v9\nv_xor_b32 v16, v51, v9\nv_xor_b32 v17, v53, v9\nv_xor_b32 v18, v55, v9\nv_or3_b32 v5, v5, v16, v17\nv_xor_b32 v16, v57, v9\nv_xor_b32 v17, v59, v9\nv_or3_b32 v5, v5, v18, v16\nv_xor_b32 v16, v61, v9\nv_xor_b32 v18, v63, v9\nv_or3_b32 v5, v5, v17, v16\nv_or_b32 v5, v5, v18")
    k("v_add_f32 v48, v48, v52\nv_add_f32 v50, v50, v54\nv_cmp_ne_u32 vcc, 0, v5\nv_add_f32 v56, v56, v60\nv_add_f32 v58, v58, v62\ns_cmp_lg_u64 vcc, 0\ns_cbranch_scc0 L_w_h1ok")
    if diag: k("s_add_u32 s98, s98, 1")
    if dual:
        k(f"s_add_u32 s68, s68, 1\ns_cmp_lt_u32 s68, {na}\ns_cbranch_scc1 L_w_h1\ns_cmp_eq_u32 s68, {na}\ns_cbranch_scc0 L_w_h1b")
        k(EX2+"\nbuffer_store_dwordx4 v[8:11], v30, s[40:43], s32 offen sc1\ns_mov_b64 exec, -1")
        k("L_w_h1b:\ns_bitcmp1_b32 s68, 0\ns_cselect_b32 s69, s67, s64")
    k("s_sub_u32 s39, s39, 1\ns_cbranch_scc0 L_w_h1\ns_mov_b32 s39, 0\nL_w_h1ok:")
    k(f"v_add_f32 v48, v48, v56\nv_add_f32 v50, v50, v58\nv_cvt_pk_bf16_f32 v48, v48, v50\nds_write_b32 v98, v48")
    if dual: k(EX2+"\nbuffer_store_dwordx4 v[8:11], v30, s[40:43], s32 offen sc1\ns_mov_b64 exec, -1")
    stamp("W H1 poll ok",1)
    k("s_waitcnt lgkmcnt(0)")
    k("L_w_h1other:")
    k("s_barrier")
    stamp("W H1 got")
    for s in range(4): k(f"ds_read_b128 v[{68+4*s}:{71+4*s}], v28 offset:{64*s}\nds_read_b128 v[{32+4*s}:{35+4*s}], v{92+s} offset:{WUK}")
    for s in range(4):
        k(f"s_waitcnt lgkmcnt({6-2*s})")
        k(f"v_mfma_f32_16x16x32_bf16 v[88:91], v[{32+4*s}:{35+4*s}], v[{68+4*s}:{71+4*s}], {'0' if s==0 else 'v[88:91]'}")
    k("s_mov_b32 exec_lo, 0x00010001\ns_mov_b32 exec_hi, 0x00010001")
    for r in range(4): k(f"v_mul_f32 v{88+r}, s34, v{88+r}")
    k("v_cvt_pk_bf16_f32 v16, v88, v89\nv_cvt_pk_bf16_f32 v17, v90, v91\nv_min_u32 v16, -2, v16\nv_min_u32 v17, -2, v17")
    k(f"ds_write_b64 v96, v[16:17]\ns_cmp_eq_u32 s3, 7\ns_cbranch_scc0 L_w_fkok\ns_mov_b64 exec, 1\ns_waitcnt vmcnt(1)")
    k(f"L_w_fk2:\nv_cmp_ne_u32 vcc, s29, v99\ns_cmp_lg_u64 vcc, 0\ns_cbranch_scc0 L_w_fkok\nbuffer_load_dword v99, v{vDM}, s[40:43], s37 offen sc1\ns_waitcnt vmcnt(0)")
    spin_retry("L_w_fk2","L_w_fkok")
    k("s_mov_b64 exec, -1\ns_waitcnt lgkmcnt(0)\ns_barrier")
    k("s_cmp_lg_u32 s3, 0\ns_cbranch_scc1 L_w_h2done")
    k(f"s_mov_b64 exec, 0xffff\nds_read_b128 v[48:51], v97\ns_waitcnt lgkmcnt(0)")
    k(f"buffer_store_dwordx4 v[48:51], v{vDM}, s[40:43], s35 offen sc1\ns_mov_b64 exec, -1")
    stamp("W H2 pub")
    k("L_w_h2done:")
    srd(44,5); srd(48,4)
    task_voff(16,5,8,9)
    k("s_barrier")
    k(f"s_lshl_b32 s68, s28, 15\ns_lshl_b32 s37, s3, 12\ns_add_u32 s68, s68, s37\ns_add_u32 s68, s68, {H3}\nv_mov_b32 v52, -1\nv_mov_b32 v53, -1\nv_mov_b32 v54, -1\nv_mov_b32 v55, -1")
    k(f"s_lshl_b32 s69, s30, 10\ns_lshl_b32 s37, s3, 7\ns_add_u32 s69, s69, s37\ns_add_u32 s69, s69, {STAT}")
    for n in range(4): k(f"buffer_store_dwordx4 v[52:55], v{vDM}, s[40:43], s68 offen offset:{1024*n} sc1")
    k(f"s_mov_b64 exec, 0xff\nbuffer_store_dwordx4 v[52:55], v{vDM}, s[40:43], s69 offen sc1\ns_mov_b64 exec, -1")
    k("s_waitcnt vmcnt(0)\ns_barrier")
    k(f"s_cmp_lg_u32 s3, 7\ns_cbranch_scc1 L_w_nofl2\ns_lshl_b32 s37, s28, 7\ns_add_u32 s37, s37, {FLAG+128*128}\nv_mov_b32 v5, s29\ns_mov_b64 exec, 1\nbuffer_store_dword v5, v{vDM}, s[40:43], s37 offen sc1\ns_mov_b64 exec, -1\nL_w_nofl2:")
    stamp("W clr done",1)
    if trig:
        k("s_cmp_lg_u32 s3, 0\ns_cbranch_scc1 L_w_trgd")
        k(f"s_lshl_b32 s37, s28, 7\ns_add_u32 s37, s37, {TRIG}\ns_mov_b64 exec, 1\nL_w_trg:\nbuffer_load_dword v5, v{vDM}, s[40:43], s37 offen sc1\ns_waitcnt vmcnt(0)\nv_cmp_ne_u32 vcc, s29, v5\ns_cmp_lg_u64 vcc, 0")
        spin_retry("L_w_trg","L_w_trgok")
        k("s_mov_b64 exec, -1\nL_w_trgd:\ns_barrier")
        stamp("W trig",1)
    k("s_mov_b32 s32, s36")
    for n in range(4):
        k(f"s_add_u32 m0, s33, {WUV+8192*n}")
        if n: k(f"s_add_u32 s32, s32, {32*8192}")
        k(f"buffer_load_dwordx4 v6, s[48:51], s32 offen lds")
    k(f"s_mul_i32 s37, s3, 5120\ns_mul_i32 s32, s28, 40960\ns_add_u32 s32, s32, s37")
    for n in range(5): k(f"s_add_u32 m0, s37, {WO+1024*n}\nbuffer_load_dwordx4 v{16+n}, s[44:47], s32 offen lds")
    k(f"s_lshl_b32 s66, s28, 10\ns_add_u32 s66, s66, {H4}\ns_add_u32 s64, s66, {H4A-H4 if dual else 0}")
    k(f"s_cmp_lg_u32 s3, 5\ns_cbranch_scc1 L_w_nopt\nbuffer_load_dwordx4 v[92:95], v{vDM}, s[40:43], s64 offen sc1\nL_w_nopt:")
    k(f"v_add_u32 v16, {WUV}, v15")
    tr1280(40,5,8); tr1280x(40,WO)
    h5voff(21,5,9)
    k("v_and_b32 v9, 1, v3")
    k(f"s_lshl_b32 s35, s3, 17\ns_lshl_b32 s37, s28, 6\ns_add_u32 s35, s35, s37\ns_add_u32 s35, s35, {H5}")
    k(f"s_lshl_b32 s63, s30, 12\ns_lshr_b32 s37, s3, 1\ns_lshl_b32 s37, s37, 10\ns_add_u32 s63, s63, s37\ns_lshl_b32 s37, s31, 8\ns_add_u32 s63, s63, s37\ns_and_b32 s37, s3, 1\ns_lshl_b32 s37, s37, 7\ns_add_u32 s63, s63, s37\ns_add_u32 s63, s63, {H4}")
    k(f"s_add_u32 s62, s63, {H4A-H4}\ns_add_u32 s36, s35, {H5Y-H5}")
    k(f"v_lshlrev_b32 v18, 3, v3\ns_lshl_b32 s67, s28, 7\ns_add_u32 s67, s67, {HINT}")
    k(f"s_lshl_b32 s37, s3, 1\nv_add_u32 v5, s37, v9\nv_mul_u32_u24 v19, 0x120, v5\nv_lshrrev_b32 v5, 2, v2\nv_lshl_add_u32 v19, v5, 6, v19\nv_lshl_add_u32 v19, v13, 5, v19\nv_lshrrev_b32 v5, 1, v3\nv_lshl_add_u32 v19, v5, 4, v19\nv_bfe_u32 v5, v2, 1, 1\nv_lshl_add_u32 v19, v5, 3, v19\nv_add_u32 v19, {ACC}, v19")
    k(f"v_mul_u32_u24 v20, 0x120, v2\nv_lshl_add_u32 v20, v3, 4, v20\nv_add_u32 v20, {ACC}, v20\nv_lshlrev_b32 v23, 4, v3\nv_add_u32 v23, {STB}, v23\ns_lshl_b32 s37, s3, 3\ns_add_u32 s37, s37, {STB}\nv_mov_b32 v24, s37\nv_lshlrev_b32 v25, 3, v2")
    k(f"v_bfe_u32 v5, v2, 1, 2\nv_lshlrev_b32 v22, 4, v5\nv_lshrrev_b32 v5, 3, v2\nv_lshl_add_u32 v22, v5, 3, v22\nv_lshl_add_u32 v22, v13, 2, v22\nv_add_u32 v22, {CX}, v22")
    for r in range(148,180): k(f"v_mov_b32 v{r}, 0")
    k("s_waitcnt vmcnt(0)\ns_barrier")
    stamp("W p2 landed")
    WV=132; WOR=100; BO=148
    GD=48; GS=64; AC=80; WL=32; WH=36; vM=26; vLs=29; tmp=5; t2=8; t3=9
    for s in range(4):
        k(f"ds_read_b64_tr_b16 v[{WV+4*s}:{WV+4*s+1}], v16 offset:{8192*s}\nds_read_b64_tr_b16 v[{WV+4*s+2}:{WV+4*s+3}], v16 offset:{8192*s+4096}")
    k("s_cmp_ge_u32 s3, 5\ns_cbranch_scc1 L_w_nowo")
    for n in range(8):
        if n%3==0: k("s_waitcnt lgkmcnt(4)")
        k(f"ds_read_b64_tr_b16 v[{WOR+4*n}:{WOR+1+4*n}], v{40+(n>>1)} offset:{8*(n&1)}\nds_read_b64_tr_b16 v[{WOR+2+4*n}:{WOR+3+4*n}], v{40+(n>>1)} offset:{8*(n&1)+20480}")
    k("L_w_nowo:")
    k("s_cmp_lg_u32 s3, 7\ns_cbranch_scc1 L_w_hintd")
    k(f"s_mov_b64 exec, 1\nL_w_hint:\nbuffer_load_dword v5, v{vDM}, s[40:43], s67 offen sc1\ns_waitcnt vmcnt(0)\nv_cmp_ne_u32 vcc, s29, v5\ns_cmp_lg_u64 vcc, 0")
    spin_retry("L_w_hint","L_w_hintok")
    k("s_mov_b64 exec, -1\nL_w_hintd:")
    k("s_mov_b64 s[70:71], -1\ns_mov_b64 s[72:73], -1\ns_mov_b64 s[74:75], -1\ns_mov_b64 s[76:77], -1\ns_barrier")
    stamp("W hint ok")
    k("L_w_g:")
    for n in range(4):
        k(f"s_mov_b64 exec, s[{70+2*n}:{71+2*n}]\ns_cbranch_execz L_w_gs{n}")
        k(f"buffer_load_dwordx4 v[{GD+4*n}:{GD+4*n+3}], v{vDM}, s[40:43], s68 offen offset:{1024*n} sc1\nbuffer_load_dwordx2 v[{GS+4*n}:{GS+4*n+1}], v18, s[40:43], s69 offen offset:{32*n} sc1")
        k(f"L_w_gs{n}:")
    k("s_mov_b64 exec, -1\ns_waitcnt vmcnt(0)")
    for n in range(4):
        r=GD+4*n
        k(f"v_max3_u32 v{GS+4*n+2}, v{r}, v{r+1}, v{r+2}\nv_max3_u32 v{GS+4*n+3}, v{r+3}, v{GS+4*n}, v{GS+4*n+1}")
    for n in range(4): k(f"v_max_u32 v{GS+4*n+2}, v{GS+4*n+2}, v{GS+4*n+3}")
    for n in range(4): k(f"v_cmp_eq_u32 s[{70+2*n}:{71+2*n}], -1, v{GS+4*n+2}")
    k("s_or_b64 s[78:79], s[70:71], s[72:73]\ns_or_b64 s[78:79], s[78:79], s[74:75]\ns_or_b64 s[78:79], s[78:79], s[76:77]")
    if diag: k("s_cselect_b32 s37, 0x10000, 0\ns_add_u32 s98, s98, s37\ns_cmp_lg_u32 s37, 0")
    spin_retry("L_w_g","L_w_gok")
    stamp("W H3 got")
    k(f"v_max3_f32 v{vM}, v{GS}, v{GS+4}, v{GS+8}\nv_max_f32 v{vM}, v{vM}, v{GS+12}")
    xgrp("v_max_f32",vM,tmp)
    for n in range(4): k(f"v_sub_f32 v{WL+n}, v{GS+4*n}, v{vM}")
    for n in range(4): k(f"v_exp_f32 v{WL+n}, v{WL+n}")
    for n in range(4): k(f"v_cvt_pk_bf16_f32 v{WL+n}, v{WL+n}, 0\nv_lshlrev_b32 v{WH+n}, 16, v{WL+n}")
    for n in range(4):
        for d in range(4):
            c0='0' if n==0 else f"v{AC+2*d}"; c1='0' if n==0 else f"v{AC+2*d+1}"
            k(f"v_dot2_f32_bf16 v{AC+2*d}, v{GD+4*n+d}, v{WL+n}, {c0}\nv_dot2_f32_bf16 v{AC+2*d+1}, v{GD+4*n+d}, v{WH+n}, {c1}")
    k(f"v_mul_f32 v{vLs}, v{WH}, v{GS+1}")
    for n in range(1,4): k(f"v_fmac_f32 v{vLs}, v{WH+n}, v{GS+4*n+1}")
    for e in range(4): k(f"v_permlane32_swap_b32 v{AC+e}, v{AC+e+4}")
    k(f"v_pk_add_f32 v[{AC}:{AC+1}], v[{AC}:{AC+1}], v[{AC+4}:{AC+5}]\nv_pk_add_f32 v[{AC+2}:{AC+3}], v[{AC+2}:{AC+3}], v[{AC+6}:{AC+7}]")
    k(f"v_cvt_pk_bf16_f32 v{AC}, v{AC}, v{AC+1}\nv_cvt_pk_bf16_f32 v{AC+1}, v{AC+2}, v{AC+3}\nds_write_b64 v19, v[{AC}:{AC+1}]")
    xgrp("v_add_f32",vLs,tmp)
    k(f"v_mov_b32 v{t2}, v{vM}\nv_mov_b32 v{t3}, v{vLs}\nds_write_b64 v24, v[{t2}:{t3}]\ns_waitcnt lgkmcnt(0)\ns_barrier")
    k(f"ds_read_b128 v[{GS}:{GS+3}], v23")
    for s in range(4): k(f"ds_read_b128 v[{GD+4*s}:{GD+4*s+3}], v20 offset:{64*s}")
    k("s_waitcnt lgkmcnt(4)")
    k(f"v_max_f32 v{vM}, v{GS}, v{GS+2}")
    xgrp("v_max_f32",vM,tmp)
    for s in range(4):
        k(f"s_waitcnt lgkmcnt({3-s})\nv_mfma_f32_16x16x32_bf16 v[{AC}:{AC+3}], v[{GD+4*s}:{GD+4*s+3}], v[{WV+4*s}:{WV+4*s+3}], {'0' if s==0 else f'v[{AC}:{AC+3}]'}")
    k(f"v_sub_f32 v{GS}, v{GS}, v{vM}\nv_sub_f32 v{GS+2}, v{GS+2}, v{vM}\nv_exp_f32 v{GS}, v{GS}\nv_exp_f32 v{GS+2}, v{GS+2}\nv_mov_b32 v{AC+5}, s29\nv_mul_f32 v{vLs}, v{GS}, v{GS+1}\nv_fmac_f32 v{vLs}, v{GS+2}, v{GS+3}")
    xgrp("v_add_f32",vLs,tmp)
    k(f"v_rcp_f32 v{vLs}, v{vLs}")
    k(f"v_add_f32 v{AC}, v{AC}, v{AC+1}\nv_add_f32 v{AC+2}, v{AC+2}, v{AC+3}\nv_mul_f32 v{AC}, v{AC}, v{GS}\nv_fmac_f32 v{AC}, v{AC+2}, v{GS+2}")
    xgrp("v_add_f32",AC,t2)
    B4=f"buffer_store_dwordx2 v[{AC+4}:{AC+5}], v25, s[40:43], s63 offen sc1"
    k(f"s_mov_b64 exec, 0xffff\nv_mul_f32 v{AC+4}, v{AC}, v{vLs}")
    if dual:
        k(f"buffer_store_dwordx2 v[{AC+4}:{AC+5}], v25, s[40:43], s62 offen\ns_cmp_eq_u32 s3, 5\ns_cbranch_scc1 L_w_h4p")
    k(B4+"\ns_mov_b64 exec, -1")
    stamp("W H4 pub")
    k("s_cmp_ge_u32 s3, 6\ns_cbranch_scc1 L_fin\ns_cmp_lg_u32 s3, 5\ns_cbranch_scc1 L_w_h4wait")
    k("L_w_h4p:\ns_mov_b64 exec, -1\ns_mov_b32 s69, s64\ns_mov_b32 s68, 0")
    k("L_w_h4:")
    k(f"buffer_load_dwordx4 v[48:51], v{vDM}, s[40:43], s69 offen sc1\ns_waitcnt vmcnt(0)")
    k("v_xor_b32 v5, s29, v49\nv_xor_b32 v8, s29, v51\nv_mov_b32 v52, v48\nv_mov_b32 v53, v50\nv_or_b32 v5, v5, v8\nv_permlane16_swap_b32 v48, v52\nv_permlane16_swap_b32 v50, v53\nv_cmp_ne_u32 vcc, 0, v5\nv_add_f32 v48, v48, v52\nv_add_f32 v50, v50, v53\ns_cmp_lg_u64 vcc, 0\ns_cbranch_scc0 L_w_h4ok")
    if dual:
        k(f"s_add_u32 s68, s68, 1\ns_cmp_lt_u32 s68, {2*na}\ns_cbranch_scc1 L_w_h4\ns_cmp_eq_u32 s68, {2*na}\ns_cbranch_scc0 L_w_h4b")
        k("s_mov_b64 exec, 0xffff\n"+B4+"\ns_mov_b64 exec, -1")
        k("L_w_h4b:\ns_bitcmp1_b32 s68, 0\ns_cselect_b32 s69, s64, s66")
    k("s_sub_u32 s39, s39, 1\ns_cbranch_scc0 L_w_h4\ns_mov_b32 s39, 0\nL_w_h4ok:")
    k("v_mov_b32 v52, v48\nv_mov_b32 v53, v50\nv_permlane32_swap_b32 v48, v52\nv_permlane32_swap_b32 v50, v53\nv_add_f32 v48, v48, v52\nv_add_f32 v50, v50, v53\nv_cvt_pk_bf16_f32 v48, v48, v50\nds_write_b32 v22, v48\ns_waitcnt lgkmcnt(0)")
    stamp("W H4 got")
    k("s_barrier")
    if dual: k("s_mov_b64 exec, 0xffff\n"+B4+"\ns_mov_b64 exec, -1")
    k("s_branch L_fin")
    k("L_w_h4wait:\ns_barrier")
    for n in range(8): k(colmask(n)+f"\nds_read_b128 v[{BO+4*n}:{BO+3+4*n}], v23 offset:{CX-STB}")
    k("s_mov_b64 exec, -1")
    for n in range(8):
        k(f"s_waitcnt lgkmcnt({7-n})\nv_mfma_f32_16x16x32_bf16 v[88:91], v[{WOR+4*n}:{WOR+3+4*n}], v[{BO+4*n}:{BO+3+4*n}], {'0' if n==0 else 'v[88:91]'}")
    h5store(88,48,21,35)
    stamp("W H5 pub")
    k("s_branch L_fin")
    SL=33792; SLOT=[0,SL,2*SL,3*SL]; PB=4*SL; FB=PB+10240; XR=FB+128; ONES=XR+1280; CF=ONES+1280; HP=CF+64; ML=HP+512
    assert ML+256<=163840
    W1=2*SL; W2A=2*SL+20480; W2B=((ML+255)//256)*256
    assert W2A+10240<=3*SL and W2B+10240<=163840
    SP=[0,16384,SL,SL+16384]
    AOP=[16,48,80,112]; TOP=[144,160,176,192]; QR=208; SA=224
    SR=[16,80]; PO=[32,96]; OA=48; STG=112
    vA,vT,vSW,vSR,vPW,vPR,vQ,vST,vM,vLs=249,252,6,7,8,9,10,11,13,14
    tmp=15; t2=240; t3=241; t4=242; t5=243; vF0=244; vF1=245; vMn=246; vSW1=247; vFA=248; vFW=250; vFR=251; vA2=253; vT2=254; vFV=0
    k(".p2align 3\nL_KV:")
    if nokv==1: k("s_endpgm")
    k(f"s_lshl_b32 s33, s3, 12\ns_lshl_b32 s66, s28, 17\ns_add_u32 s66, s66, s33\ns_mul_i32 s67, s3, 4224\ns_mov_b32 s65, {FLAG}")
    ws_setup()
    srd(44,1)
    def dma(t):
        for n in range(4):
            k(f"s_add_u32 m0, s67, {SLOT[t]+1056*n}\ns_add_u32 s33, s66, {t*32768+1024*n}\nbuffer_load_dwordx4 v{vDM}, s[44:47], s33 offen lds")
    k("s_cmp_eq_u32 s3, 5\ns_cbranch_scc0 L_k_not_ln")
    ln_load(SA)
    k("L_k_not_ln:")
    k("s_cmp_eq_u32 s3, 7\ns_cbranch_scc0 L_k_not7")
    k("v_mov_b32 v16, -1\nv_mov_b32 v17, -1\nv_mov_b32 v18, -1\nv_mov_b32 v19, -1")
    k(f"s_lshl_b32 s37, s28, 8\ns_add_u32 s37, s37, {H2}\ns_mov_b64 exec, 0xffff\nbuffer_store_dwordx4 v[16:19], v{vDM}, s[40:43], s37 offen sc1\ns_mov_b64 exec, -1")
    k("L_k_not7:")
    k(f"s_getpc_b64 s[60:61]\ns_lshl_b32 s33, s3, 10\ns_add_u32 s60, s60, s33\ns_addc_u32 s61, s61, 0\nglobal_load_dwordx4 v[{QR}:{QR+3}], v{vDM}, s[60:61]")
    def dma1(i):
        t,n=i>>2,i&3
        k(f"s_add_u32 m0, s67, {SLOT[t]+1056*n}\ns_add_u32 s33, s66, {t*32768+1024*n}\nbuffer_load_dwordx4 v{vDM}, s[44:47], s33 offen lds")
    k(f"v_lshrrev_b32 v{tmp}, 3, v1\nv_lshlrev_b32 v{vST}, 17, v{tmp}\nv_and_b32 v{t2}, 7, v1\nv_lshl_add_u32 v{vST}, v{t2}, 4, v{vST}")
    k("s_lshr_b32 s34, s3, 1\ns_and_b32 s35, s3, 1")
    k(f"s_lshl_b32 s32, s34, 15\ns_lshl_b32 s33, s28, 8\ns_add_u32 s60, s32, s33\ns_lshl_b32 s33, s35, 7\ns_add_u32 s60, s60, s33\ns_add_u32 s60, s60, {H3}\ns_add_u32 s61, s60, {8*131072}\ns_add_u32 s62, s61, {8*131072}\ns_add_u32 s63, s62, {8*131072}")
    k(f"s_lshl_b32 s69, s3, 12\ns_lshl_b32 s33, s28, 3\ns_add_u32 s69, s69, s33\ns_add_u32 s69, s69, {STAT}")
    k(f"s_lshl_b32 s38, s3, 12")
    k(f"v_mul_u32_u24 v{vA}, 0x420, v2\nv_lshl_add_u32 v{vA}, v3, 4, v{vA}\ns_lshl_b32 s33, s34, 8\nv_add_u32 v{vA}, s33, v{vA}\nv_add_u32 v{vA2}, {2*SL}, v{vA}")
    k(f"v_lshrrev_b32 v{tmp}, 2, v2\nv_lshl_add_u32 v{tmp}, v3, 2, v{tmp}\nv_mul_u32_u24 v{vT}, 0x420, v{tmp}\nv_and_b32 v{tmp}, 3, v2\nv_lshl_add_u32 v{vT}, v{tmp}, 3, v{vT}\ns_lshl_b32 s33, s3, 7\nv_add_u32 v{vT}, s33, v{vT}\nv_add_u32 v{vT2}, {2*SL}, v{vT}")
    k(f"v_and_b32 v{tmp}, 7, v2\nv_xor_b32 v{tmp}, v{tmp}, v3\nv_lshlrev_b32 v{tmp}, 4, v{tmp}\nv_lshl_add_u32 v{vSW}, v2, 7, v{tmp}\ns_lshl_b32 s33, s34, 12\ns_lshl_b32 s32, s35, 11\ns_add_u32 s33, s33, s32\nv_add_u32 v{vSW}, s33, v{vSW}\nv_xor_b32 v{vSW1}, 64, v{vSW}")
    k(f"s_lshl_b32 s33, s3, 2\nv_add_u32 v{t4}, s33, v3\nv_and_b32 v{tmp}, 7, v{t4}\nv_lshrrev_b32 v{t5}, 1, v2\nv_xor_b32 v{tmp}, v{tmp}, v{t5}\nv_lshlrev_b32 v{tmp}, 4, v{tmp}\nv_lshl_add_u32 v{vSR}, v{t4}, 7, v{tmp}\nv_and_b32 v{tmp}, 1, v2\nv_lshl_add_u32 v{vSR}, v{tmp}, 3, v{vSR}")
    k(f"v_mul_u32_u24 v{vPW}, 80, v{t4}\nv_lshl_add_u32 v{vPW}, v{tmp}, 2, v{vPW}\nv_and_b32 v{tmp}, 3, v{t5}\nv_lshl_add_u32 v{vPW}, v{tmp}, 4, v{vPW}\nv_lshrrev_b32 v{tmp}, 3, v2\nv_lshl_add_u32 v{vPW}, v{tmp}, 3, v{vPW}\nv_add_u32 v{vPW}, {PB}, v{vPW}")
    k(f"v_lshlrev_b32 v{vFW}, 2, v{t4}\nv_add_u32 v{vFW}, {FB}, v{vFW}\nv_lshlrev_b32 v{vFR}, 2, v2\nv_add_u32 v{vFR}, {FB}, v{vFR}")
    k(f"v_mul_u32_u24 v{vPR}, 80, v2\nv_lshl_add_u32 v{vPR}, v3, 4, v{vPR}\nv_add_u32 v{vPR}, {PB}, v{vPR}")
    k(f"v_lshlrev_b32 v{vQ}, 10, v3\nv_lshl_add_u32 v{vQ}, v2, 4, v{vQ}\ns_lshl_b32 s64, s35, 14\ns_lshl_b32 s33, s34, 8\ns_add_u32 s64, s64, s33\ns_add_u32 s64, s64, {H2}")
    k(f"s_add_u32 s70, s64, 4096\ns_add_u32 s71, s64, 8192\ns_add_u32 s72, s64, 12288")
    k(f"s_lshl_b32 s33, s35, 6\ns_add_u32 s33, s33, s34\nv_lshl_add_u32 v{vFA}, v2, 2, s33\ns_lshl_b32 s33, s3, 4\ns_add_u32 s33, s33, 128\nv_add_u32 v{t5}, s33, v2\nv_and_b32 v{tmp}, 1, v3\nv_cmp_eq_u32 vcc, 1, v{tmp}\nv_cndmask_b32 v{vFA}, v{vFA}, v{t5}, vcc\nv_lshlrev_b32 v{vFA}, 7, v{vFA}")
    def pull(t):
        a,tt=(vA,vT) if t<2 else (vA2,vT2); b=SL*(t&1)
        for kh in range(2):
            for s in range(4):
                r=AOP[t]+16*kh+4*s
                k(f"ds_read_b128 v[{r}:{r+3}], v{a} offset:{b+kh*16*1056+64*s}")
        k("s_waitcnt lgkmcnt(7)")
        for tau in range(4):
            r=TOP[t]+4*tau
            k(f"ds_read_b64_tr_b16 v[{r}:{r+1}], v{tt} offset:{b+32*tau}\nds_read_b64_tr_b16 v[{r+2}:{r+3}], v{tt} offset:{b+32*tau+16*1056}")
    def qloads():
        for s in range(4): k(f"buffer_load_dwordx4 v[{QR+4*s}:{QR+4*s+3}], v{vQ}, s[40:43], s{[64,70,71,72][s]} offen sc1")
    def flload(): k(f"s_mov_b64 exec, 0xffff\nbuffer_load_dword v{vFV}, v{vFA}, s[40:43], s65 offen sc1\ns_mov_b64 exec, -1")
    def dotrig(pos):
        if trig!=pos: return
        k(f"s_cmp_lg_u32 s3, 7\ns_cbranch_scc1 L_k_notrig\ns_lshl_b32 s32, s28, 7\ns_add_u32 s32, s32, {TRIG}\nv_mov_b32 v{t5}, s29\ns_mov_b64 exec, 1\nbuffer_store_dword v{t5}, v{vDM}, s[40:43], s32 offen sc1\ns_mov_b64 exec, -1\nL_k_notrig:")
    vQW2,vOW,vOW2,vOR=SA+12,SA+13,SA+14,SA+15
    if kvstart=="pf": k("s_waitcnt vmcnt(0)")
    k(f"s_cmp_eq_u32 s3, 7\ns_cbranch_scc0 L_k_nofk\ns_lshl_b32 s37, s28, 7\ns_add_u32 s37, s37, {FLAG}\ns_waitcnt vmcnt(0) lgkmcnt(0)\ns_add_u32 s32, s29, 1\nv_mov_b32 v{t5}, s32\ns_mov_b64 exec, 1\nbuffer_store_dword v{t5}, v{vDM}, s[40:43], s37 offen sc1\ns_mov_b64 exec, -1\nL_k_nofk:")
    assert win
    pulled=0
    def after_tile(t):
        k("s_waitcnt lgkmcnt(0)\ns_barrier")
        stamp(f"K t{t}", 0 if t==0 else 1)
        dotrig(t+1)
        pull(t)
    def flcheck():
        k("s_mov_b64 exec, 0xffff")
        k(f"L_k_fl:\nv_cmp_ne_u32 vcc, s29, v{vFV}\ns_cmp_lg_u64 vcc, 0\ns_cbranch_scc0 L_k_flok\nbuffer_load_dword v{vFV}, v{vFA}, s[40:43], s65 offen sc1\ns_waitcnt vmcnt(0)")
        spin_retry("L_k_fl","L_k_flok")
        k("s_mov_b64 exec, -1")
    if diag: k("s_memrealtime s[86:87]")
    ops=[]
    for i in range(win):
        dma1(i); ops.append(("d",i))
        if i==3: k("s_barrier")
    k("s_cmp_eq_u32 s3, 5\ns_cbranch_scc0 L_k_ln_done")
    ln_stats(SA,16,XR,CF,f"s_waitcnt vmcnt({1+win})")
    k("L_k_ln_done:")
    k("s_cmp_eq_u32 s3, 6\ns_cbranch_scc0 L_k_not6")
    ones(ONES)
    k("L_k_not6:")
    k(f"v_lshlrev_b32 v{tmp}, 1, v3\nv_xor_b32 v{tmp}, v{tmp}, v2\nv_lshlrev_b32 v{tmp}, 4, v{tmp}\nv_lshl_add_u32 v4, v3, 8, v{tmp}\nv_add_u32 v4, s38, v4\nv_xor_b32 v{vQW2}, 0x80, v4")
    k(f"v_and_b32 v{t2}, 7, v2\nv_lshlrev_b32 v{tmp}, 1, v{t2}\nv_xor_b32 v{tmp}, v{tmp}, v3\nv_lshlrev_b32 v{tmp}, 4, v{tmp}\nv_lshl_add_u32 v5, v2, 8, v{tmp}\nv_add_u32 v5, s38, v5\nv_xor_b32 v{vF0}, 64, v5\nv_xor_b32 v{vF1}, 0x80, v5\nv_xor_b32 v{vMn}, 0xc0, v5")
    k("s_waitcnt lgkmcnt(0)\ns_add_u32 s29, s29, 1")
    if diag:
        names["K go"]=len(names)+1; k(f"v_writelane_b32 v255, s86, {names['K go']}")
    def wait_for(op): k(f"s_waitcnt vmcnt({len(ops)-1-ops.index(op)})")
    assert flpos>=win and qpos>flpos
    k("s_mov_b32 s73, 0")
    for nxt in range(win,17):
        if nxt<16:
            wait_for(("d",nxt-win))
        if nxt==flpos and kvstart!="flags": flload(); ops.append(("f",0))
        if nxt==qpos:
            if kvstart!="flags":
                wait_for(("f",0))
                k(f"s_mov_b64 exec, 0xffff\nv_cmp_ne_u32 vcc, s29, v{vFV}\ns_cmp_lg_u64 vcc, 0\ns_cbranch_scc0 L_k_qgo")
                for j in range(4): k(f"buffer_load_dword v{vFV}, v{vFA}, s[40:43], s65 offen sc1")
                k("s_mov_b64 exec, -1\ns_mov_b32 s73, 1\ns_branch L_k_qskip\nL_k_qgo:\ns_mov_b64 exec, -1")
            qloads(); ops+= [("q",i) for i in range(4)]
            k("L_k_qskip:")
        if nxt<16:
            dma1(nxt); ops.append(("d",nxt))
            while nxt-win+1>=4*(pulled+1) and pulled<3:
                after_tile(pulled); pulled+=1
    while pulled<3:
        wait_for(("d",4*pulled+3)); after_tile(pulled); pulled+=1
    srd(52,7); srd(56,8)
    k(f"v_lshrrev_b32 v{vT}, 1, v1\nv_mul_u32_u24 v{vT}, 0xd80, v{vT}\nv_and_b32 v{vA}, 1, v1\nv_lshl_add_u32 v{vT}, v{vA}, 4, v{vT}")
    k(f"s_mul_i32 s74, s3, {32*3456}\ns_lshl_b32 s37, s28, 5\ns_add_u32 s74, s74, s37\ns_lshl_b32 s75, s3, 10\ns_mul_i32 s76, s28, 20480\ns_add_u32 s76, s76, s75")
    k(f"s_add_u32 s77, s75, {W2A}\ns_add_u32 s78, s75, {W2A+8192}\ns_add_u32 s79, s75, {W2B+8192-10240}\ns_cmp_lt_u32 s3, 2\ns_cselect_b32 s78, s78, s79\ns_add_u32 s79, s75, {W2B+16384-10240}")
    wait_for(("q",3))
    if kvstart!="flags":
        k("s_cmp_eq_u32 s73, 0\ns_cbranch_scc1 L_k_q")
        flcheck(); qloads(); k("s_waitcnt vmcnt(0)")
    k("L_k_q:")
    k(f"v_max3_u32 v{tmp}, v{QR}, v{QR+1}, v{QR+2}\nv_max3_u32 v{t2}, v{QR+3}, v{QR+4}, v{QR+5}\nv_max3_u32 v{t3}, v{QR+6}, v{QR+7}, v{QR+8}\nv_max3_u32 v{t4}, v{QR+9}, v{QR+10}, v{QR+11}\nv_max3_u32 v{t5}, v{QR+12}, v{QR+13}, v{QR+14}\nv_max3_u32 v{tmp}, v{tmp}, v{t2}, v{QR+15}\nv_max3_u32 v{t3}, v{t3}, v{t4}, v{t5}\nv_max_u32 v{tmp}, v{tmp}, v{t3}")
    k(f"v_cmp_eq_u32 vcc, -1, v{tmp}\ns_cmp_lg_u64 vcc, 0\ns_cbranch_scc0 L_k_qok\ns_mov_b64 exec, vcc")
    qloads()
    k("s_mov_b64 exec, -1\ns_waitcnt vmcnt(0)")
    if diag: k("s_add_u32 s98, s98, 1\ns_cmp_eq_u32 s3, s3")
    spin_retry("L_k_q","L_k_qok")
    k("s_waitcnt lgkmcnt(8)")
    for n in range(4): k(f"ds_write_b128 v{[4,vQW2][n&1]}, v[{QR+4*n}:{QR+4*n+3}] offset:{SL+1024*n}")
    k("s_waitcnt lgkmcnt(0)")
    for n in range(4): k(f"ds_read_b128 v[{QR+4*n}:{QR+4*n+3}], v{[5,vF0,vF1,vMn][n]} offset:{SL}")
    k("s_waitcnt lgkmcnt(0)")
    stamp("K Q ok")
    def g1(t,ti):
        o=[]
        for kh in range(2):
            d=SA+8*ti+4*kh
            for s in range(4):
                a=AOP[t]+16*kh+4*s
                o.append(f"v_mfma_f32_16x16x32_bf16 v[{d}:{d+3}], v[{a}:{a+3}], v[{QR+4*s}:{QR+4*s+3}], {'0' if s==0 else f'v[{d}:{d+3}]'}")
        return o
    def sw(t,ti,kh):
        d=SA+8*ti+4*kh
        return f"ds_write_b128 v{[vSW,vSW1][kh]}, v[{d}:{d+3}] offset:{SP[t]}"
    def sread(half):
        return [f"ds_read_b64 v[{SR[half]+8*ti+2*cq}:{SR[half]+8*ti+2*cq+1}], v{vSR} offset:{SP[2*half+ti]+4096*cq}" for ti in range(2) for cq in range(4)]
    def softmax(half):
        o=[]; R=SR[half]
        for ti in range(2):
            d=R+8*ti
            o+=lines(f"v_pk_add_f32 v[{d}:{d+1}], v[{d}:{d+1}], v[{d+2}:{d+3}]\nv_pk_add_f32 v[{d+4}:{d+5}], v[{d+4}:{d+5}], v[{d+6}:{d+7}]")
        for ti in range(2):
            d=R+8*ti
            o.append(f"v_pk_add_f32 v[{d}:{d+1}], v[{d}:{d+1}], v[{d+4}:{d+5}]")
        o+=lines(f"v_max_f32 v{vMn}, v{R}, v{R+1}\nv_max3_f32 v{vMn}, v{vMn}, v{R+8}, v{R+9}")
        o+=rowred_l("v_max_f32",vMn)
        if half==0: o.append(f"v_ceil_f32 v{vM}, v{vMn}")
        else:
            o+=lines(f"v_add_f32 v{tmp}, {f32(T)}, v{vM}\nv_cmp_gt_f32 vcc, v{vMn}, v{tmp}\nv_ceil_f32 v{vMn}, v{vMn}\nv_cndmask_b32 v{vMn}, v{vM}, v{vMn}, vcc\nv_sub_f32 v{tmp}, v{vM}, v{vMn}\nv_exp_f32 v{tmp}, v{tmp}\nv_mov_b32 v{vM}, v{vMn}")
        for ti in range(2):
            d=R+8*ti
            o+=lines(f"v_sub_f32 v{d}, v{d}, v{vM}\nv_sub_f32 v{d+1}, v{d+1}, v{vM}")
        if half==1: o+=lines(f"ds_write_b32 v{vFW}, v{tmp}\nv_mul_f32 v{vLs}, v{vLs}, v{tmp}")
        for ti in range(2):
            d=R+8*ti
            o+=lines(f"v_exp_f32 v{d}, v{d}\nv_exp_f32 v{d+1}, v{d+1}")
        for ti in range(2):
            d=R+8*ti
            o+=lines(f"v_cvt_pk_bf16_f32 v{d+2}, v{d}, v{d+1}\nds_write_b32 v{vPW}, v{d+2} offset:{2560*(2*half+ti)}")
        o.append(f"v_pk_add_f32 v[{R}:{R+1}], v[{R}:{R+1}], v[{R+8}:{R+9}]")
        if half==0: o.append(f"v_add_f32 v{vLs}, v{R}, v{R+1}")
        else: o+=lines(f"v_add_f32 v{vLs}, v{vLs}, v{R}\nv_add_f32 v{vLs}, v{vLs}, v{R+1}")
        return o
    def pread(half):
        return [f"ds_read_b128 v[{PO[half]+8*ti+4*hh}:{PO[half]+8*ti+4*hh+3}], v{vPR} offset:{2560*(2*half+ti)+1280*hh}" for ti in range(2) for hh in range(2)]
    def g2(t,ti,half,tau,hh,first):
        d=OA+16*hh+4*tau; a=TOP[t]+4*tau; b=PO[half]+8*ti+4*hh
        return f"v_mfma_f32_16x16x32_bf16 v[{d}:{d+3}], v[{a}:{a+3}], v[{b}:{b+3}], {'0' if first else f'v[{d}:{d+3}]'}"
    k(".p2align 3")
    a,b=g1(0,0),g1(1,1)
    ad=lines(f"v_and_b32 v{t2}, 7, v2\nv_and_b32 v{t4}, 1, v3\nv_lshlrev_b32 v{t4}, 1, v{t4}\nv_lshrrev_b32 v{t3}, 1, v3\nv_add_u32 v{t4}, v{t4}, v{t3}\nv_xor_b32 v{t4}, v{t4}, v{t2}\nv_lshlrev_b32 v{t4}, 4, v{t4}\nv_lshl_add_u32 v4, v2, 7, v{t4}\nv_add_u32 v4, s38, v4\nv_xor_b32 v5, 64, v4")
    ad+=lines(f"v_lshrrev_b32 v{t4}, 3, v1\nv_and_b32 v{t3}, 7, v1\nv_xor_b32 v{t3}, v{t3}, v{t4}\nv_lshlrev_b32 v{t3}, 4, v{t3}\nv_lshl_add_u32 v10, v{t4}, 7, v{t3}\nv_add_u32 v10, s38, v10")
    k("\n".join(interleave(a,ad)+b[:3]+[sw(0,0,0)]+b[3:6]+[sw(0,0,1)]+b[6:]+[sw(1,1,0),sw(1,1,1)]))
    stamp("K P1",1)
    k("s_waitcnt vmcnt(0) lgkmcnt(0)\ns_barrier")
    stamp("K t3")
    a,b=g1(2,0),g1(3,1)
    k("\n".join(sread(0)))
    pa=[f"ds_read_b128 v[{AOP[3]+16*kh+4*s}:{AOP[3]+16*kh+4*s+3}], v{vA2} offset:{SL+kh*16*1056+64*s}" for kh in range(2) for s in range(4)]
    pt=[x for tau in range(4) for x in (f"ds_read_b64_tr_b16 v[{TOP[3]+4*tau}:{TOP[3]+4*tau+1}], v{vT2} offset:{SL+32*tau}",f"ds_read_b64_tr_b16 v[{TOP[3]+4*tau+2}:{TOP[3]+4*tau+3}], v{vT2} offset:{SL+32*tau+16*1056}")]
    k("\n".join(pa[:7]))
    k(f"s_mov_b32 exec_lo, 0xffff0000\ns_mov_b32 exec_hi, 0\nbuffer_load_dword v{vFV}, v{vFA}, s[40:43], s65 offen sc1\ns_mov_b64 exec, -1")
    def ffnloads():
        k("s_cmp_ge_u32 s28, 108\ns_cbranch_scc1 L_k_ffn_ldd")
        for n in range(3):
            if n==2: k("s_cmp_ge_u32 s3, 4\ns_cbranch_scc1 L_k_ffn_ldd")
            k(f"s_add_u32 m0, s75, {W1+8192*n}")
            if n: k(f"s_add_u32 s74, s74, {8*32*3456}")
            k(f"buffer_load_dwordx4 v{vT}, s[52:55], s74 offen lds\ns_mov_b32 m0, s{77+n}")
            if n: k("s_add_u32 s76, s76, 8192")
            k(f"buffer_load_dwordx4 v{vDM}, s[56:59], s76 offen lds")
        k("L_k_ffn_ldd:")
    if ffnearly: ffnloads()
    sm=softmax(0)
    k("\n".join(a[:3]+["s_waitcnt lgkmcnt(7)",pa[7]]+interleave(a[3:],sm[:12])+["s_waitcnt lgkmcnt(0)"]+interleave(b,pt[:4]+sm[12:17]+[sw(2,0,0),sw(2,0,1)]+sm[17:]+pt[4:])+[sw(3,1,0),sw(3,1,1)]))
    k("s_waitcnt lgkmcnt(0)\ns_barrier")
    stamp("K P2",1)
    k("\n".join(sread(1)+pread(0)))
    mm=[g2(ti,ti,0,tau,hh,ti==0) for ti in range(2) for tau in range(4) for hh in range(2)]
    sm=softmax(1)
    k("s_waitcnt lgkmcnt(4)")
    k("\n".join(sm[:6]))
    k("s_waitcnt lgkmcnt(0)")
    k("\n".join(interleave(mm[:12],sm[6:],lead=0)))
    if ffnearly:
        k("s_cmp_ge_u32 s28, 108\ns_cbranch_scc1 L_k_w0\ns_cmp_ge_u32 s3, 4\ns_cbranch_scc1 L_k_w4\ns_waitcnt vmcnt(6)\ns_branch L_k_wd\nL_k_w4:\ns_waitcnt vmcnt(4)\ns_branch L_k_wd\nL_k_w0:\ns_waitcnt vmcnt(0)\nL_k_wd:")
    else: k("s_waitcnt vmcnt(0)")
    k("s_waitcnt lgkmcnt(0)\ns_mov_b32 exec_lo, 0xffff0000\ns_mov_b32 exec_hi, 0")
    k(f"L_k_fl2:\nv_cmp_ne_u32 vcc, s29, v{vFV}\ns_cmp_lg_u64 vcc, 0\ns_cbranch_scc0 L_k_fl2ok\nbuffer_load_dword v{vFV}, v{vFA}, s[40:43], s65 offen sc1\ns_waitcnt vmcnt(0)")
    spin_retry("L_k_fl2","L_k_fl2ok")
    k("s_mov_b64 exec, -1\ns_barrier")
    def hint(pos):
        if pos!=hintpos: return
        k(f"s_cmp_lg_u32 s3, {hintwave}\ns_cbranch_scc1 L_k_nohint\ns_lshl_b32 s32, s28, 7\ns_add_u32 s32, s32, {HINT}\nv_mov_b32 v{t5}, s29\ns_mov_b64 exec, 1\nbuffer_store_dword v{t5}, v{vDM}, s[40:43], s32 offen sc1\ns_mov_b64 exec, -1\nL_k_nohint:")
    hint(1)
    stamp("K P3",1)
    k(f"ds_read2_b32 v[{vF0}:{vF1}], v{vFR} offset0:0 offset1:16")
    k("\n".join(pread(1)))
    k("\n".join(interleave(mm[12:],rowred_l("v_add_f32",vLs))))
    k("s_waitcnt lgkmcnt(4)")
    k(f"v_min_f32 v{tmp}, v{vF0}, v{vF1}\nv_cmp_neq_f32 vcc, 1.0, v{tmp}\ns_cmp_lg_u64 vcc, 0\ns_cbranch_scc0 L_k_norescale")
    for hh in range(2):
        for r in range(16): k(f"v_mul_f32 v{OA+16*hh+r}, v{vF0+hh}, v{OA+16*hh+r}")
    k("L_k_norescale:\ns_waitcnt lgkmcnt(0)")
    groups=[(pi,hh) for hh in range(2) for pi in range(2)]
    def gm(pi,hh): return [g2(2+ti,ti,1,tau,hh,False) for ti in range(2) for tau in (2*pi,2*pi+1)]
    def ep(gi,pi,hh):
        q=STG+4*gi; d=OA+16*hh+8*pi
        o=[f"v_cvt_pk_bf16_f32 v{q+r}, v{d+2*r}, v{d+2*r+1}" for r in range(4)]
        o+=[f"v_min_u32 v{q+r}, -2, v{q+r}" for r in range(4)]
        o+=[f"v_permlane16_swap_b32 v{q}, v{q+2}",f"v_permlane16_swap_b32 v{q+1}, v{q+3}",f"ds_write_b128 v{[4,5][pi]}, v[{q}:{q+3}] offset:{2048*hh}"]
        return o
    def rd(n): return f"ds_read_b128 v[{128+4*n}:{131+4*n}], v10 offset:{1024*n}"
    def stv(n): return f"buffer_store_dwordx4 v[{128+4*n}:{131+4*n}], v{vST}, s[40:43], s{60+n} offen sc1"
    st=lines(f"v_min_u32 v{t2}, -2, v{vM}\nv_min_u32 v{t3}, -2, v{vLs}\nv_lshlrev_b32 v{t4}, 10, v3")
    k("\n".join(interleave(gm(*groups[0])+gm(*groups[1]),st)))
    k(f"s_mov_b32 exec_lo, 0x00010001\ns_mov_b32 exec_hi, 0x00010001\nbuffer_store_dwordx2 v[{t2}:{t3}], v{t4}, s[40:43], s69 offen sc1\ns_mov_b64 exec, -1")
    k("\n".join(interleave(gm(*groups[2]),ep(0,*groups[0]))))
    k("\n".join(interleave(gm(*groups[3]),ep(1,*groups[1]))))
    k("\n".join(["s_waitcnt lgkmcnt(0)",rd(0),rd(1)]+ep(2,*groups[2])+["s_waitcnt lgkmcnt(1)",stv(0),stv(1)]+ep(3,*groups[3])+["s_waitcnt lgkmcnt(0)",rd(2),rd(3),"s_waitcnt lgkmcnt(1)",stv(2),"s_waitcnt lgkmcnt(0)",stv(3)]))
    hint(0)
    stamp("K H3 pub")
    if not ffnearly: k("s_barrier"); ffnloads()
    for r in range(88,108): k(f"v_mov_b32 v{r}, 0")
    h5voff(21,6,7)
    k(f"s_lshl_b32 s36, s3, 17\ns_lshl_b32 s37, s28, 6\ns_add_u32 s36, s36, s37\ns_add_u32 s36, s36, {H5Y}")
    k("s_cmp_ge_u32 s28, 108\ns_cbranch_scc1 L_k_noffn")
    k(f"v_lshrrev_b32 v6, 2, v2\nv_and_b32 v7, 1, v3\nv_lshl_add_u32 v6, v7, 2, v6\nv_mul_u32_u24 v40, 0x500, v6\nv_and_b32 v7, 3, v2\nv_lshl_add_u32 v40, v7, 4, v40\nv_lshrrev_b32 v7, 1, v3\nv_mul_u32_u24 v7, {W2B-W2A}, v7\ns_lshl_b32 s37, s3, 8\ns_min_u32 s37, s37, 1024\ns_add_u32 s37, s37, {W2A}\nv_add3_u32 v40, v40, v7, s37")
    k(f"s_add_u32 s37, s75, {W1}\nv_lshl_add_u32 v6, v1, 3, s37\nv_lshlrev_b32 v28, 4, v3\nv_mul_u32_u24 v8, 0x500, v{vA}\ns_lshl_b32 s37, s3, 6\ns_add_u32 s32, s37, {XR}\nv_add3_u32 v8, v8, v28, s32\nv_add_u32 v28, {HP}, v28\nv_add_u32 v9, s37, v28\nv_lshlrev_b32 v31, 2, v{vA}\nv_add_u32 v31, {CF}, v31\nds_read_b32 v27, v31")
    for n in range(3): k(f"ds_read_b128 v[{68+4*n}:{71+4*n}], v8 offset:{512*n}")
    k("s_waitcnt vmcnt(0)\ns_barrier")
    stamp("K ffn landed",1)
    for n in range(3):
        k(f"ds_read_b64_tr_b16 v[{48+4*n}:{49+4*n}], v6 offset:{8192*n}\nds_read_b64_tr_b16 v[{50+4*n}:{51+4*n}], v6 offset:{8192*n+512}")
    for n in range(8): k(f"ds_read_b64_tr_b16 v[{144+2*n}:{145+2*n}], v40 offset:{64*(n>>1)+8*(n&1)}")
    k("s_waitcnt lgkmcnt(8)")
    k("v_mfma_f32_16x16x32_bf16 v[32:35], v[48:51], v[68:71], 0\nv_mfma_f32_16x16x32_bf16 v[32:35], v[52:55], v[72:75], v[32:35]")
    k("s_cmp_ge_u32 s3, 4\ns_cbranch_scc1 L_k_f1x")
    k("v_mfma_f32_16x16x32_bf16 v[32:35], v[56:59], v[76:79], v[32:35]")
    k("L_k_f1x:")
    for r in range(4): k(f"v_mul_f32 v{32+r}, v27, v{32+r}")
    for r in range(4): k(f"v_add_f32 v{32+r}, v{32+r}, v{32+r} quad_perm:[1,0,3,2] {DPP}")
    k(f"s_mov_b32 exec_lo, 0x00010001\ns_mov_b32 exec_hi, 0x00010001\nds_write_b128 v9, v[32:35]\ns_mov_b64 exec, -1\ns_waitcnt lgkmcnt(0)\ns_barrier\ns_cmp_ge_u32 s3, 5\ns_cbranch_scc1 L_fin")
    for w in range(8): k(f"ds_read_b128 v[{48+4*w}:{51+4*w}], v28 offset:{64*w}")
    k("s_waitcnt lgkmcnt(0)")
    for st_ in (16,8,4):
        for q in range(0,st_,2): k(f"v_pk_add_f32 v[{48+q}:{49+q}], v[{48+q}:{49+q}], v[{48+q+st_}:{49+q+st_}]")
    for r in range(4): k(f"v_max_f32 v{48+r}, 0, v{48+r}")
    for n in range(8): k(colmask(n)+f"\nv_cvt_pk_bf16_f32 v{92+2*n}, v48, v49\nv_cvt_pk_bf16_f32 v{93+2*n}, v50, v51")
    k("s_mov_b64 exec, -1")
    for n in range(8): k(f"v_mfma_f32_16x16x16_bf16 v[88:91], v[{144+2*n}:{145+2*n}], v[{92+2*n}:{93+2*n}], v[88:91]")
    k("L_k_noffn:\ns_cmp_ge_u32 s3, 5\ns_cbranch_scc1 L_fin")
    h5store(88,56,21,36)
    stamp("K y pub")
    k("s_cmp_ge_u32 s3, 2\ns_cbranch_scc1 L_fin\ns_cmp_ge_u32 s28, 80\ns_cbranch_scc1 L_fin")
    srd(44,0); srd(48,9)
    k(f"v_and_b32 v{t2}, 3, v2\nv_lshlrev_b32 v{t2}, 2, v{t2}\nv_and_b32 v{t4}, 2, v3\nv_add_u32 v{t2}, v{t2}, v{t4}\ns_lshl_b32 s34, s28, 4\nbuffer_load_ushort v{t3}, v{t2}, s[44:47], s34 offen\nv_lshlrev_b32 v{t5}, 2, v1\nv_add_u32 v{t5}, {PB}, v{t5}")
    def gather5(base,lbl,res):
        k(f"s_lshl_b32 s68, s28, 13\ns_mul_i32 s69, s3, {H5Y-H5}\ns_add_u32 s68, s68, s69\ns_add_u32 s68, s68, {base}\ns_add_u32 s69, s68, 4096")
        if h5gate:
            k(f"s_lshl_b32 s70, s28, 6\ns_add_u32 s70, s70, s68\ns_mov_b64 exec, 1\nL_{lbl}g:\nbuffer_load_dwordx2 v[16:17], v{vDM}, s[40:43], s70 offen sc1\ns_waitcnt vmcnt(0)\nv_cmp_ne_u32 vcc, s29, v17\ns_cmp_lg_u64 vcc, 0")
            spin_retry(f"L_{lbl}g",f"L_{lbl}gok")
            k("s_mov_b64 exec, -1")
        k(f"L_{lbl}:")
        for n in range(8): k(f"buffer_load_dwordx4 v[{16+4*n}:{19+4*n}], v{vDM}, s[40:43], s{68+(n>>2)} offen offset:{1024*(n&3)} sc1")
        k("s_mov_b64 exec, -1\ns_waitcnt vmcnt(0)")
        for j in range(16): k(f"v_xor_b32 v{48+j}, s29, v{17+2*j}")
        for j in range(5): k(f"v_or3_b32 v{48+3*j}, v{48+3*j}, v{49+3*j}, v{50+3*j}")
        k("v_or3_b32 v48, v48, v51, v54\nv_or3_b32 v57, v57, v60, v63\nv_or_b32 v48, v48, v57")
        k(f"v_cmp_ne_u32 vcc, 0, v48\ns_cmp_lg_u64 vcc, 0\ns_cbranch_scc0 L_{lbl}ok\ns_mov_b64 exec, vcc")
        spin_retry(f"L_{lbl}",f"L_{lbl}ok")
        k("s_mov_b64 exec, -1")
        for st in (16,8,4):
            for q in range(0,st,2): k(f"v_add_f32 v{16+q}, v{16+q}, v{16+q+st}")
        k(f"v_permlane32_swap_b32 v16, v18\nv_add_f32 v16, v16, v18\nv_mov_b32 v18, v16\nv_permlane16_swap_b32 v16, v18\nv_add_f32 v16, v16, v18")
        k(f"v_add_f32 v16, v16, v16 row_ror:4 {DPP}\nv_add_f32 v16, v16, v16 row_ror:8 {DPP}")
        rb(res,16)
    gather5(H5,"k_rs",66)
    k("s_cmp_eq_u32 s3, 0\ns_cbranch_scc1 L_k_fs")
    stamp("K y got",1)
    k(f"v_mul_f32 v65, {f32(-math.log2(math.e))}, v66\nv_exp_f32 v65, v65\nv_add_f32 v65, 1.0, v65\nv_rcp_f32 v65, v65\nv_mul_f32 v65, v66, v65")
    rb(65,65)
    k(f"ds_write_b32 v{t5}, v65\ns_waitcnt lgkmcnt(0)\ns_barrier\ns_branch L_fin")
    k("L_k_fs:")
    stamp("K H5 got")
    k(f"s_barrier\nds_read_b32 v65, v{t5}\nv_lshlrev_b32 v{t3}, 16, v{t3}\ns_waitcnt lgkmcnt(0)")
    k("v_mul_f32 v18, v66, v65"); rb(18,18)
    k(f"v_add_f32 v18, v18, v{t3}\nv_cvt_pk_bf16_f32 v18, v18, v18")
    k(f"s_mov_b32 exec_lo, 0x0000000f\ns_mov_b32 exec_hi, 0x0000000f\nbuffer_store_short v18, v{t2}, s[48:51], s34 offen")
    k("s_cmp_lg_u32 s28, 0\ns_cbranch_scc1 L_fin")
    k(f"s_mov_b64 exec, 1\nv_mov_b32 v16, s29\nbuffer_store_dword v16, v{vDM}, s[40:43], 0 offen sc1")
    k("L_fin:")
    if probe is not None:
        if probe=="end": k("s_waitcnt vmcnt(0)"); stamp("end")
        if probe=="start": k("s_mov_b32 s84, s82")
        k(f"s_cmp_eq_u32 s84, 0\ns_cbranch_scc1 L_end\ns_sub_u32 s84, s84, s82\ns_mul_i32 s84, s84, {pmul}\ns_add_u32 s84, s84, 6000\ns_add_u32 s84, s84, s82")
        k("L_probe:\ns_sleep 8\ns_memrealtime s[86:87]\ns_waitcnt lgkmcnt(0)\ns_sub_u32 s86, s86, s84\ns_cmp_lt_i32 s86, 0\ns_cbranch_scc1 L_probe")
    if diag:
        k("s_waitcnt vmcnt(0)\ns_mov_b64 exec, -1")
        stamp("end")
        k("v_writelane_b32 v255, s82, 0\nv_writelane_b32 v255, s98, 63")
        k(f"s_lshl_b32 s32, s2, 3\ns_add_u32 s32, s32, s3\ns_lshl_b32 s32, s32, 8\ns_add_u32 s32, s32, {STAMP}\nv_lshlrev_b32 v3, 2, v1")
        k("buffer_store_dword v255, v3, s[40:43], s32 offen")
        json.dump(names,open("stamp_names.json","w"))
    k("L_end:\ns_endpgm")
    k(".fill 2304, 4, 0xbf800000")
    k.L=hz.process(k.L)
    hdr=open("cdna_kernels/"+NAME+".s.ref").read().split("; Override")[0].rstrip("\n").split("\n")
    return assemble_file(hdr+[f"; @launch grid=(256,1,1) block=(512,1,1) lds=163840"], [(k,256,102,256)])
def emit(name, **kw):
    open(name+"_d.s","w").write(gen(diag=True,**kw)); shutil.copy("stamp_names.json",name+"_d.json")
    open(name+"_p.s","w").write(gen(diag=False,**kw))
if __name__=="__main__":
    B=dict(win=8,uksplit=4,flpos=8,qpos=12,ffnearly=False,kvstart="pf")
    emit("s1",**B,trig=2); emit("s2",**B,trig=3); emit("s3",**B,trig=3,h5gate=False); emit("s4",**B,trig=3,hintwave=0); emit("s5",**{**B,"qpos":14},trig=3,fine=True)
```
